```python
import torch

def _softmax(x, axis=-1):
    return torch.softmax(x, dim=axis)
def _gelu(x):
    return torch.nn.functional.gelu(x, approximate="tanh")
def _silu(x):
    return torch.nn.functional.silu(x)
def _sigmoid(x):
    return torch.sigmoid(x)
def _layernorm(x, axis=-1, eps=1e-5):
    m = x.mean(dim=axis, keepdim=True)
    v = x.var(dim=axis, keepdim=True, unbiased=False)
    return (x - m) / torch.sqrt(v + eps)
def _scatter_add(tgt, idx, src, axis=0):
    return tgt.clone().index_add_(axis, idx, src)
def _segment_sum(src, seg, n):
    out = torch.zeros((n,) + src.shape[1:], dtype=src.dtype)
    return out.index_add_(0, seg, src)
def _pad(x, pw):
    flat = tuple(v for pair in reversed(pw) for v in pair)
    return torch.nn.functional.pad(x, flat)

kernel_name = 'interleave_layers__spectral_fnet__dense_activation_relu__prompt'

def setup_inputs():

    _w = (lambda a: (lambda t: t.to(torch.bfloat16) if t.is_floating_point() else t)(torch.as_tensor(a)))
    def _A_setup():
        B, S, D = 1, 2048, 640
        ns = torch.arange(S)[:, None] * torch.arange(S)[None, :]
        nd = torch.arange(D)[:, None] * torch.arange(D)[None, :]
        Ws_re = torch.cos(-2.0 * torch.pi * ns / S).to(float)
        Ws_im = torch.sin(-2.0 * torch.pi * ns / S).to(float)
        Wd_re = torch.cos(-2.0 * torch.pi * nd / D).to(float)
        Wd_im = torch.sin(-2.0 * torch.pi * nd / D).to(float)
        return {
            "x": _w((lambda *s: torch.randn(*s, dtype=torch.bfloat16) * 0.05)(B, S, D)),
            "dft_seq_re": _w(Ws_re),
            "dft_seq_im": _w(Ws_im),
            "dft_hid_re": _w(Wd_re),
            "dft_hid_im": _w(Wd_im),
        }
    _A_in = _A_setup()

    def _B_setup():
        B, S, D, Dff = 1, 2048, 640, 1536
        return {
            "x": _w((lambda *s: torch.randn(*s, dtype=torch.bfloat16) * 0.05)(B, S, D)),
            "w1": _w((lambda *s: torch.randn(*s, dtype=torch.bfloat16) * 1.6)(D, Dff)),
            "w2": _w((lambda *s: torch.randn(*s, dtype=torch.bfloat16) * 1.6)(Dff, D)),
        }
    _B_in = _B_setup()

    return {
        "A_x": _A_in["x"],
        "A_dft_seq_re": _A_in["dft_seq_re"],
        "A_dft_seq_im": _A_in["dft_seq_im"],
        "A_dft_hid_re": _A_in["dft_hid_re"],
        "A_dft_hid_im": _A_in["dft_hid_im"],
        "B_x": _B_in["x"],
        "B_w1": _B_in["w1"],
        "B_w2": _B_in["w2"],
    }

def reference(A_x, A_dft_seq_re, A_dft_seq_im, A_dft_hid_re, A_dft_hid_im, B_x, B_w1, B_w2):
    def _A_ref(x, dft_seq_re, dft_seq_im, dft_hid_re, dft_hid_im):
        a = torch.einsum("bsd,ed->bse", x, dft_hid_re)
        b = torch.einsum("bsd,ed->bse", x, dft_hid_im)
        y = torch.einsum("ts,bse->bte", dft_seq_re, a) - torch.einsum("ts,bse->bte", dft_seq_im, b)
        return y

    def _B_ref(x, w1, w2):
        h = torch.einsum("bsd,df->bsf", x, w1)
        zero = torch.zeros_like(h)
        h = torch.maximum(h, zero)
        return torch.einsum("bsf,fd->bsd", h, w2)

    x = A_x
    x = x + _A_ref(_layernorm(x, axis=-1), A_dft_seq_re, A_dft_seq_im, A_dft_hid_re, A_dft_hid_im)
    x = x + _B_ref(_layernorm(x, axis=-1), B_w1, B_w2)
    x = x + _A_ref(_layernorm(x, axis=-1), A_dft_seq_re, A_dft_seq_im, A_dft_hid_re, A_dft_hid_im)
    x = x + _B_ref(_layernorm(x, axis=-1), B_w1, B_w2)
    return x
```

```python
NAME = "interleave_layers__spectral_fnet__dense_activation_relu__prompt"
HEADER = open("cdna_kernels/%s.s.ref" % NAME).read().split("; Override launch")[0]

KA = dict(x=0, seq_re=8, seq_im=16, hid_re=24, hid_im=32, bx=40, w1=48, w2=56, out=64, dbg=72, ws=80)

class K:
    def __init__(self, name, grid, block, lds=0, vgpr=256, agpr=0, sgpr=102, wgy=False):
        self.name, self.grid, self.block, self.lds = name, grid, block, lds
        self.vgpr, self.agpr, self.sgpr, self.wgy = vgpr, agpr, sgpr, wgy
        self.lines = []
        self.nlab = 0
    def __call__(self, s):
        for l in s.strip("\n").split("\n"):
            self.lines.append("    " + l.strip())
    def label(self, base="L"):
        self.nlab += 1
        return "%s_%s_%d" % (base, self.name, self.nlab)
    def put(self, lab):
        self.lines.append(lab + ":")
    def text(self):
        o = [".globl %s" % self.name, ".p2align 8", ".type %s,@function" % self.name, self.name + ":"]
        o += self.lines
        return "\n".join(o) + "\n"
    def desc(self):
        acc = (self.vgpr + 3) // 4 * 4
        nfv = acc + self.agpr if self.agpr else self.vgpr
        o = [".p2align 6", ".amdhsa_kernel %s" % self.name,
             "  .amdhsa_next_free_vgpr %d" % nfv,
             "  .amdhsa_next_free_sgpr %d" % self.sgpr,
             "  .amdhsa_accum_offset %d" % acc,
             "  .amdhsa_group_segment_fixed_size 0",
             "  .amdhsa_kernarg_size 88",
             "  .amdhsa_user_sgpr_count 2",
             "  .amdhsa_user_sgpr_kernarg_segment_ptr 1",
             "  .amdhsa_system_sgpr_workgroup_id_x 1"]
        if self.wgy:
            o.append("  .amdhsa_system_sgpr_workgroup_id_y 1")
        o.append(".end_amdhsa_kernel")
        return "\n".join(o) + "\n"

def build(launches, path, rodata=""):
    o = HEADER
    for k in launches:
        g = k.grid if isinstance(k.grid, tuple) else (k.grid, 1, 1)
        o += "; @launch kernel=%s grid=(%d,%d,%d) block=(%d,1,1) lds=%d\n" % (k.name, g[0], g[1], g[2], k.block, k.lds)
    o += '.amdgcn_target "amdgcn-amd-amdhsa--gfx950"\n.text\n'
    seen = []
    for k in launches:
        if k not in seen:
            seen.append(k)
    for k in seen:
        o += k.text()
    o += '.section .rodata,"a"\n'
    for k in seen:
        o += k.desc()
    o += rodata
    open(path, "w").write(o)
    return o

def srd(k, sd, sptr, off, nbytes):
    if off:
        k("s_add_u32 s%d, s%d, 0x%x" % (sd, sptr, off))
        k("s_addc_u32 s%d, s%d, 0" % (sd + 1, sptr + 1))
    else:
        k("s_mov_b32 s%d, s%d" % (sd, sptr))
        k("s_mov_b32 s%d, s%d" % (sd + 1, sptr + 1))
    k("s_mov_b32 s%d, 0x%x" % (sd + 2, nbytes))
    k("s_mov_b32 s%d, 0x20000" % (sd + 3))
```

```python
import sys
from asmlib import *
S, D, F = 2048, 640, 1536
MB = 1 << 20
WS = dict(xn=0, abT=4*MB, x1=12*MB, x2=16*MB, x3=20*MB, h=24*MB, w1T=32*MB, w2T=36*MB)

def loadptrs(k):
    k("s_load_dwordx16 s[4:19], s[0:1], 0")
    k("s_load_dwordx2 s[20:21], s[0:1], 64")
    k("s_load_dwordx2 s[22:23], s[0:1], 80")
    k("s_waitcnt lgkmcnt(0)")
PTR = dict(x=4, seq_re=6, seq_im=8, hid_re=10, hid_im=12, bx=14, w1=16, w2=18, out=20)
def buf(k, sd, name, nbytes, extra=0):
    if name in PTR: srd(k, sd, PTR[name], extra, nbytes)
    else: srd(k, sd, 22, WS[name] + extra, nbytes)

def wavesum(k, v, t):
    k(f"s_nop 1\nv_add_f32_dpp v{v}, v{v}, v{v} quad_perm:[1,0,3,2] row_mask:0xf bank_mask:0xf")
    k(f"s_nop 1\nv_add_f32_dpp v{v}, v{v}, v{v} quad_perm:[2,3,0,1] row_mask:0xf bank_mask:0xf")
    k(f"s_nop 1\nv_add_f32_dpp v{v}, v{v}, v{v} row_half_mirror row_mask:0xf bank_mask:0xf")
    k(f"s_nop 1\nv_add_f32_dpp v{v}, v{v}, v{v} row_mirror row_mask:0xf bank_mask:0xf")
    k(f"v_mov_b32 v{t}, v{v}\ns_nop 1\nv_permlane16_swap_b32 v{t}, v{v}\ns_nop 1\nv_add_f32 v{v}, v{v}, v{t}")
    k(f"v_mov_b32 v{t}, v{v}\ns_nop 1\nv_permlane32_swap_b32 v{t}, v{v}\ns_nop 1\nv_add_f32 v{v}, v{v}, v{t}")

def ln(name, src, dst):
    k = K(name, S, 64, vgpr=32)
    k("s_cmp_ge_u32 s2, %d" % S); done = k.label(); k("s_cbranch_scc1 " + done)
    loadptrs(k)
    buf(k, 24, src, S*D*2); buf(k, 28, dst, S*D*2)
    k("s_mul_i32 s3, s2, %d" % (D*2))
    k("v_lshlrev_b32 v1, 2, v0\nv_add_u32 v1, s3, v1")
    for j in range(5): k(f"buffer_load_dword v{2+j}, v1, s[24:27], 0 offen offset:{256*j}")
    k("s_waitcnt vmcnt(0)")
    for j in range(5):
        k(f"v_lshlrev_b32 v{10+2*j}, 16, v{2+j}\nv_and_b32 v{11+2*j}, 0xffff0000, v{2+j}")
    k("v_mov_b32 v20, v10")
    for j in range(1, 10): k(f"v_add_f32 v20, v20, v{10+j}")
    wavesum(k, 20, 21)
    k("v_mul_f32 v20, 0x%08x, v20" % 0x3acccccd)
    for j in range(10): k(f"v_sub_f32 v{10+j}, v{10+j}, v20")
    k("v_mul_f32 v20, v10, v10")
    for j in range(1, 10): k(f"v_fmac_f32 v20, v{10+j}, v{10+j}")
    wavesum(k, 20, 21)
    k("v_mov_b32 v21, 0x3727c5ac\nv_fmac_f32 v21, 0x3acccccd, v20\nv_rsq_f32 v21, v21\ns_nop 0")
    for j in range(10): k(f"v_mul_f32 v{10+j}, v{10+j}, v21")
    for j in range(5):
        k(f"v_cvt_pk_bf16_f32 v{2+j}, v{10+2*j}, v{11+2*j}")
        k(f"buffer_store_dword v{2+j}, v1, s[28:31], 0 offen offset:{256*j}")
    k.put(done); k("s_endpgm")
    return k

def transp(name, src, dst, R, C):
    n = R*C//8
    k = K(name, n//256, 256, vgpr=32)
    k("s_cmp_ge_u32 s2, %d" % (n//256)); done = k.label(); k("s_cbranch_scc1 " + done)
    loadptrs(k)
    buf(k, 24, src, R*C*2); buf(k, 28, dst, R*C*2)
    k("s_lshl_b32 s3, s2, 8\nv_add_u32 v1, s3, v0")
    magic = (1 << 32)//C + 1
    k(f"s_mov_b32 s3, {magic}\nv_mul_hi_u32 v2, v1, s3\ns_mov_b32 s3, {C}\nv_mul_lo_u32 v3, v2, s3\nv_sub_u32 v3, v1, v3")
    k(f"s_mov_b32 s3, {C*16}\nv_mul_lo_u32 v4, v2, s3\nv_lshl_add_u32 v4, v3, 1, v4")
    for j in range(8):
        k(f"buffer_load_ushort v{8+j}, v4, s[24:27], 0 offen\nv_add_u32 v4, {C*2}, v4")
    k(f"s_mov_b32 s3, {R*2}\nv_mul_lo_u32 v5, v3, s3\nv_lshl_add_u32 v5, v2, 4, v5")
    k("s_waitcnt vmcnt(0)")
    for j in range(4): k(f"v_lshl_or_b32 v{16+j}, v{9+2*j}, 16, v{8+2*j}")
    k("buffer_store_dwordx4 v[16:19], v5, s[28:31], 0 offen")
    k.put(done); k("s_endpgm")
    return k

def gemm(name, pairs, I, J, Kd, dst, dst_extra=0, neg=False, relu=False, res=None):
    ti, tj = I//64, J//64
    k = K(name, (ti, tj, 1), 64, vgpr=128, wgy=True)
    k("s_cmp_ge_u32 s2, %d" % ti); done = k.label(); k("s_cbranch_scc1 " + done)
    k("s_mov_b32 s40, s2\ns_mov_b32 s41, s3")
    loadptrs(k)
    k("v_and_b32 v1, 15, v0\nv_lshrrev_b32 v2, 4, v0")
    k("s_lshl_b32 s42, s40, 6\ns_lshl_b32 s43, s41, 6")
    k(f"s_mov_b32 s44, {Kd*2}")
    for t in range(4):
        k(f"v_add_u32 v{4+t}, s42, v1\nv_add_u32 v{4+t}, {16*t}, v{4+t}\nv_mul_lo_u32 v{4+t}, v{4+t}, s44\nv_lshl_add_u32 v{4+t}, v2, 4, v{4+t}")
        k(f"v_add_u32 v{8+t}, s43, v1\nv_add_u32 v{8+t}, {16*t}, v{8+t}\nv_mul_lo_u32 v{8+t}, v{8+t}, s44\nv_lshl_add_u32 v{8+t}, v2, 4, v{8+t}")
    for r in range(64): k(f"v_mov_b32 v{64+r}, 0")
    for (P, pe, Q, qe) in pairs:
        buf(k, 24, P, I*Kd*2, pe); buf(k, 28, Q, J*Kd*2, qe)
        k("s_mov_b32 s45, 0")
        lp = k.label(); k.put(lp)
        for t in range(4):
            k(f"buffer_load_dwordx4 v[{16+4*t}:{19+4*t}], v{4+t}, s[24:27], s45 offen")
            k(f"buffer_load_dwordx4 v[{32+4*t}:{35+4*t}], v{8+t}, s[28:31], s45 offen")
        k("s_waitcnt vmcnt(0)")
        for a in range(4):
            for b in range(4):
                r = 64 + 16*a + 4*b
                k(f"v_mfma_f32_16x16x32_bf16 v[{r}:{r+3}], v[{16+4*a}:{19+4*a}], v[{32+4*b}:{35+4*b}], v[{r}:{r+3}]")
        k(f"s_add_u32 s45, s45, 64\ns_cmp_lt_u32 s45, {Kd*2}\ns_cbranch_scc1 {lp}")
    k("s_nop 15")
    buf(k, 24, dst, I*J*2, dst_extra)
    if res: buf(k, 28, res, I*J*2)
    k(f"s_mov_b32 s44, {I*2}")
    for b in range(4):
        k(f"v_add_u32 v12, s43, v1\nv_add_u32 v12, {16*b}, v12\nv_mul_lo_u32 v12, v12, s44\nv_lshl_add_u32 v12, v2, 3, v12\ns_lshl_b32 s46, s42, 1\nv_add_u32 v12, s46, v12")
        for a in range(4):
            r = 64 + 16*a + 4*b
            if res:
                k(f"buffer_load_dwordx2 v[16:17], v12, s[28:31], 0 offen offset:{32*a}\ns_waitcnt vmcnt(0)")
                k(f"v_cvt_pk_bf16_f32 v20, v{r}, v{r+1}\nv_cvt_pk_bf16_f32 v21, v{r+2}, v{r+3}")
                k(f"v_lshlrev_b32 v{r}, 16, v20\nv_and_b32 v{r+1}, 0xffff0000, v20\nv_lshlrev_b32 v{r+2}, 16, v21\nv_and_b32 v{r+3}, 0xffff0000, v21")
                k(f"v_lshlrev_b32 v18, 16, v16\nv_add_f32 v{r}, v{r}, v18\nv_and_b32 v18, 0xffff0000, v16\nv_add_f32 v{r+1}, v{r+1}, v18")
                k(f"v_lshlrev_b32 v18, 16, v17\nv_add_f32 v{r+2}, v{r+2}, v18\nv_and_b32 v18, 0xffff0000, v17\nv_add_f32 v{r+3}, v{r+3}, v18")
            for q in range(4):
                if relu: k(f"v_max_f32 v{r+q}, 0, v{r+q}")
                if neg: k(f"v_sub_f32 v{r+q}, 0, v{r+q}")
            k(f"v_cvt_pk_bf16_f32 v22, v{r}, v{r+1}\nv_cvt_pk_bf16_f32 v23, v{r+2}, v{r+3}")
            k(f"buffer_store_dwordx2 v[22:23], v12, s[24:27], 0 offen offset:{32*a}\ns_nop 1")
    k.put(done); k("s_endpgm")
    return k

def nop_kernel():
    k = K("nop_kernel", 256, 256, vgpr=8)
    k("s_endpgm")
    return k

def main(path, nnop):
    L = []
    L.append(transp("tw1_kernel", "w1", "w1T", D, F))
    L.append(transp("tw2_kernel", "w2", "w2T", F, D))
    ha = gemm("ha_kernel", [("xn", 0, "hid_re", 0)], S, D, D, "abT")
    hb = gemm("hb_kernel", [("xn", 0, "hid_im", 0)], S, D, D, "abT", dst_extra=S*D*2, neg=True)
    g1 = gemm("g1_kernel", [("w1T", 0, "xn", 0)], F, S, D, "h", relu=True)
    for lay, (xi, xm, xo) in enumerate([("x", "x1", "x2"), ("x2", "x3", "out")]):
        L.append(ln(f"lna{lay}_kernel", xi, "xn"))
        L += [ha, hb]
        L.append(gemm(f"sq{lay}_kernel", [("abT", 0, "seq_re", 0), ("abT", S*D*2, "seq_im", 0)], D, S, S, xm, res=xi))
        L.append(ln(f"lnb{lay}_kernel", xm, "xn"))
        L.append(g1)
        L.append(gemm(f"g2{lay}_kernel", [("w2T", 0, "h", 0)], D, S, F, xo, res=xm))
    nk = nop_kernel()
    L += [nk]*nnop
    build(L, path)

if __name__ == "__main__":
    main(sys.argv[1], int(sys.argv[2]))
```

```python
import sys, base
from asmlib import *
def mk(name, n):
    k = K(name, 256, 256, vgpr=64)
    for r in range(40): k(f"v_mov_b32 v{8+r}, 0")
    k(f".rept {n//16}")
    for i in range(16):
        r = 16 + (i % 16); k(f"v_fma_f32 v{r}, v8, v9, v{r}")
    k(".endr")
    k("s_endpgm")
    return k
import asmlib
orig = asmlib.build
def run(path, extra):
    def b(L, p, rodata=""):
        return orig(L + extra, p, rodata)
    base.build = b
    base.main(path, 0)
ks = [mk(f"z{i}_kernel", 4096) for i in range(8)]
run("if_a.s", ks)
run("if_b.s", [ks[0]]*8)
run("if_c.s", [base.nop_kernel()]*8)
run("if_d.s", [ks[0]])
run("if_e.s", [base.nop_kernel()])
run("if_f.s", [ks[0], ks[0]])
```

```python
import sys
from asmlib import *
import asmlib, hazard, tables
S, D, F = 2048, 640, 1536
U0, XN, X1, X2, H, W1F, W2F, ST, FL, STAMP, U1 = 0, 0x280000, 0x500000, 0x780000, 0xA00000, 0x1000000, 0x11E0000, 0x13C0000, 0x13E0000, 0x1400000, 0x1500000
TOFF, TBLOB = tables.blob()
T_S1, T_HA, T_HB, T_TW = TOFF
OOB = 0x20000000
WS, XS, OS, TS = "s[4:7]", "s[8:11]", "s[12:15]", "s[16:19]"
sW, sJ, sCL, sSIG = 20, 21, 22, 23

class VM:
    def __init__(self, k): self.k, self.q = k, []
    def op(self, s, tag=None): self.k(s); self.q.append(tag); assert len(self.q) <= 63 or True
    def wait(self, *tags):
        ii = [i for i, t in enumerate(self.q) if t in tags]
        if not ii: return
        idx = max(ii)
        n = len(self.q) - 1 - idx
        assert n <= 63
        self.k(f"s_waitcnt vmcnt({n})"); self.q = self.q[idx + 1:]
    def drain(self): self.k("s_waitcnt vmcnt(0)"); self.q = []

def ids(k, done):
    k(f"s_cmp_ge_u32 s2, 256\ns_cbranch_scc1 {done}")
def ids2(k):
    k(f"""s_lshr_b32 s3, s2, 3
    s_and_b32 s{sJ}, s3, 7
    s_lshr_b32 s3, s2, 6
    s_and_b32 s24, s2, 7
    s_lshl_b32 s{sCL}, s24, 2
    s_add_u32 s{sCL}, s{sCL}, s3
    s_lshr_b32 s25, s{sCL}, 1
    s_sub_u32 s26, 32, s25
    s_cmp_eq_u32 s25, 0
    s_cselect_b32 s26, 16, s26
    s_bitcmp1_b32 s3, 0
    s_cselect_b32 s{sSIG}, s26, s25
    v_lshrrev_b32 v1, 6, v0
    v_and_b32 v0, 63, v0
    v_readfirstlane_b32 s{sW}, v1""")
def tblsrd(k, total_from="code_start"):
    l = k.label("pc")
    k("s_getpc_b64 s[16:17]"); k.put(l)
    k(f"s_add_u32 s16, s16, tbl-{l}\ns_addc_u32 s17, s17, 0\ns_mov_b32 s18, {len(TBLOB)}\ns_mov_b32 s19, 0x20000")

def stamp(k, n, on):
    if on: k(f"s_memrealtime s[{60+2*n}:{61+2*n}]")
def stamp_flush(k, nst, slot, on):
    if not on: return
    k("s_waitcnt lgkmcnt(0)")
    k(f"s_lshl_b32 s58, s2, 4\ns_add_u32 s58, s58, s{sW}\ns_lshl_b32 s58, s58, 6\ns_add_u32 s58, s58, {STAMP + slot*0x40000}\nv_mov_b32 v1, 0")
    for i in range(nst):
        k(f"v_mov_b32 v2, s{60+2*i}\nbuffer_store_dword v2, v1, {WS}, s58 offen offset:{4*i}")

def s1_stage(k, vm, xl, nt_s, cst, tiles_pairs, with4, ubase, vt, gq_s=None):
    a0, a4, vo, vo4, op, acc = vt, vt + 1, vt + 2, vt + 3, vt + 4, vt + 20
    k(f"""v_lshrrev_b32 v{a0}, 2, v0
    v_mul_u32_u24 v{a0}, 160, v{a0}
    v_and_b32 v{a4}, 1, v0
    v_lshl_add_u32 v{a4}, v{a4}, 3, v{a0}
    v_bfe_u32 v{vo}, v0, 1, 1
    v_mul_u32_u24 v{vo}, 80, v{vo}
    v_add3_u32 v{a4}, v{a4}, v{vo}, 64
    v_and_b32 v{vo}, 3, v0
    v_lshl_add_u32 v{a0}, v{vo}, 3, v{a0}
    v_bfe_u32 v{vo}, v0, 1, 3
    v_mul_u32_u24 v{vo}, 81920, v{vo}
    v_and_b32 v{vo4}, 1, v0
    v_lshl_add_u32 v{vo}, v{vo4}, 7, v{vo}
    v_bfe_u32 v{op}, v0, 4, 1
    v_lshl_add_u32 v{vo4}, v{op}, 13, v{vo}
    v_lshrrev_b32 v{op}, 5, v0
    v_lshl_add_u32 v{vo4}, v{op}, 3, v{vo4}
    v_lshrrev_b32 v{op}, 4, v0
    v_lshl_add_u32 v{vo}, v{op}, 13, v{vo}
    s_mul_i32 s30, s{nt_s}, 655360
    s_lshl_b32 s31, s{sSIG}, 8
    s_add_u32 s30, s30, s31
    s_lshl_b32 s31, s{sJ}, 4
    s_add_u32 s30, s30, s31
    s_add_u32 s30, s30, {ubase}
    s_add_u32 s32, s30, 65536""")
    if xl >= 49152:
        k(f"v_add_u32 v{a0}, {xl}, v{a0}\nv_add_u32 v{a4}, {xl}, v{a4}"); xl = 0
    if gq_s is not None:
        k(f"s_lshl_b32 s31, s{gq_s}, 5\nv_add_u32 v{a0}, s31, v{a0}\ns_lshl_b32 s31, s{gq_s}, 15\ns_add_u32 s30, s30, s31")
    def body():
        for gq in tiles_pairs:
            for bit in range(2):
                for ka in range(2):
                    for h in range(2):
                        r = op + 8*bit + 4*ka + 2*h
                        k(f"ds_read_b64_tr_b16 v[{r}:{r+1}], v{a0} offset:{xl + (32*ka + 16*h)*160 + 80*bit + 32*gq}")
            for bit in range(2):
                for ka in range(2):
                    r = op + 8*bit + 4*ka
                    k(f"s_waitcnt lgkmcnt({6 - 4*bit - 2*ka})")
                    c = "0" if ka == 0 else f"v[{acc+4*bit}:{acc+4*bit+3}]"
                    k(f"v_mfma_f32_16x16x32_f16 v[{acc+4*bit}:{acc+4*bit+3}], v[{r}:{r+3}], v[{cst+4*ka}:{cst+4*ka+3}], {c}")
            for x in range(4):
                k(f"v_cvt_pk_f16_f32 v{acc+8+x}, v{acc+2*x}, v{acc+2*x+1}")
            if gq: k(f"s_add_u32 s33, s30, {gq*32768}")
            vm.op(f"buffer_store_dwordx4 v[{acc+8}:{acc+11}], v{vo}, {WS}, s{33 if gq else 30} offen")
    def body4():
        for ka in range(2):
            for h in range(2):
                r = op + 4*ka + 2*h
                k(f"ds_read_b64_tr_b16 v[{r}:{r+1}], v{a4} offset:{xl + (32*ka + 16*h)*160}")
        for ka in range(2):
            k(f"s_waitcnt lgkmcnt({2 - 2*ka})")
            c = "0" if ka == 0 else f"v[{acc}:{acc+3}]"
            k(f"v_mfma_f32_16x16x32_f16 v[{acc}:{acc+3}], v[{op+4*ka}:{op+4*ka+3}], v[{cst+4*ka}:{cst+4*ka+3}], {c}")
        k(f"v_cvt_pk_f16_f32 v{acc+12}, v{acc}, v{acc+1}\nv_cvt_pk_f16_f32 v{acc+13}, v{acc+2}, v{acc+3}")
        vm.op(f"buffer_store_dwordx2 v[{acc+12}:{acc+13}], v{vo4}, {WS}, s32 offen")
    return body, body4

def gen_ka(stamps=False):
    k = K("ka_kernel", 256, 640, lds=10240 + 2*12288, vgpr=104)
    done = k.label("done"); prep = k.label("prep")
    ids(k, done)
    k("s_load_dwordx2 s[8:9], s[0:1], 0\ns_load_dwordx4 s[36:39], s[0:1], 48\ns_load_dwordx2 s[4:5], s[0:1], 80")
    stamp(k, 0, stamps)
    tblsrd(k); ids2(k)
    k(f"s_mov_b32 s10, {S*D*2}\ns_mov_b32 s11, 0x20000\ns_mov_b32 s6, 0x10000000\ns_mov_b32 s7, 0x20000")
    k(f"s_cmp_ge_u32 s{sW}, 8\ns_cbranch_scc1 {prep}")
    vm = VM(k)
    k(f"""v_lshrrev_b32 v2, 4, v0
    v_mul_u32_u24 v2, 81920, v2
    v_and_b32 v3, 15, v0
    v_lshl_add_u32 v2, v3, 4, v2
    v_lshlrev_b32 v4, 4, v0
    s_lshr_b32 s27, s{sW}, 2
    s_and_b32 s28, s{sW}, 3
    s_lshl_b32 s24, s27, 5
    s_lshl_b32 s25, s28, 9
    s_add_u32 s24, s24, s25
    s_add_u32 s24, s24, s{sSIG}
    s_mul_i32 s24, s24, 1280
    s_add_u32 s25, s24, {256*1280}
    s_mul_i32 s26, s{sJ}, 160
    s_add_u32 s34, s24, s26
    s_add_u32 s35, s25, s26
    s_lshl_b32 s29, s28, 11
    s_waitcnt lgkmcnt(0)""")
    X = [8, 28]; SL = [48, 52]; CST = 56
    for hh in range(2):
        for n in range(5):
            vm.op(f"buffer_load_dwordx4 v[{X[hh]+4*n}:{X[hh]+4*n+3}], v2, {XS}, s{24+hh} offen offset:{256*n}", ("x", hh, n))
    for hh in range(2):
        vm.op(f"buffer_load_dwordx4 v[{SL[hh]}:{SL[hh]+3}], v2, {XS}, s{34+hh} offen", "sl")
    for ka in range(2):
        vm.op(f"buffer_load_dwordx4 v[{CST+4*ka}:{CST+4*ka+3}], v4, {TS}, s29 offen offset:{T_S1 + 1024*ka}", "cst")
    body, body4 = s1_stage(k, vm, 0, 28, CST, [0], 'dyn', U0, 64, gq_s=27)
    k(f"""s_mul_i32 s26, s{sW}, 1280
    v_lshrrev_b32 v5, 4, v0
    v_mul_u32_u24 v5, 160, v5
    v_lshl_add_u32 v5, v3, 4, v5
    v_add_u32 v5, s26, v5
    v_mov_b32 v6, 0x3f803f80""")
    A = 84
    for r in range(4): k(f"v_mov_b32 v{A+r}, 0")
    for hh in range(2):
        for n in range(5):
            vm.wait(("x", hh, n))
            for d in range(4):
                r = X[hh] + 4*n + d
                k(f"v_dot2c_f32_bf16 v{A+2*hh}, v{r}, v6\nv_dot2c_f32_bf16 v{A+2*hh+1}, v{r}, v{r}")
    stamp(k, 1, stamps)
    for m in ("quad_perm:[1,0,3,2]", "quad_perm:[2,3,0,1]", "row_half_mirror", "row_mirror"):
        for r in range(4): k(f"v_add_f32_dpp v{A+r}, v{A+r}, v{A+r} {m} row_mask:0xf bank_mask:0xf")
    for hh in range(2):
        m, q = A + 2*hh, A + 2*hh + 1
        k(f"""v_mul_f32 v{m}, 0x3acccccd, v{m}
        v_mul_f32 v{q}, 0x3acccccd, v{q}
        v_fma_f32 v{q}, -v{m}, v{m}, v{q}
        v_max_f32 v{q}, 0, v{q}
        v_add_f32 v{q}, 0x3727c5ac, v{q}
        v_rsq_f32 v{q}, v{q}""")
    for hh in range(2):
        m, q = A + 2*hh, A + 2*hh + 1
        k(f"v_mul_f32 v{m}, v{m}, v{q}")
    vm.wait("sl")
    for hh in range(2):
        m, q = A + 2*hh, A + 2*hh + 1
        t = 8 + 8*hh
        for d in range(4):
            k(f"v_lshlrev_b32 v{t+2*d}, 16, v{SL[hh]+d}\nv_and_b32 v{t+2*d+1}, 0xffff0000, v{SL[hh]+d}")
        for d in range(4):
            k(f"v_pk_fma_f32 v[{t+2*d}:{t+2*d+1}], v[{t+2*d}:{t+2*d+1}], v[{m}:{q}], v[{m}:{q}] op_sel:[0,1,0] op_sel_hi:[1,1,0] neg_lo:[0,0,1] neg_hi:[0,0,1]")
        for d in range(4):
            k(f"v_cvt_pk_f16_f32 v{SL[hh]+d}, v{t+2*d}, v{t+2*d+1}")
    k("v_cmp_gt_u32 vcc, 10, v3\ns_and_saveexec_b64 s[40:41], vcc")
    for hh in range(2): k(f"ds_write_b128 v5, v[{SL[hh]}:{SL[hh]+3}] offset:{640*hh}")
    k("s_mov_b64 exec, s[40:41]")
    vm.wait("cst")
    k("s_waitcnt lgkmcnt(0)\ns_barrier")
    stamp(k, 2, stamps)
    body()
    sk = k.label("sk"); k(f"s_cmp_eq_u32 s27, 0\ns_cbranch_scc1 {sk}")
    body4(); k.put(sk)
    stamp(k, 3, stamps); stamp_flush(k, 4, 0, stamps)
    k("s_endpgm")
    k.put(prep)
    w2p, nou, fin = k.label("w2p"), k.label("nou"), k.label("fin")
    k(f"""s_sub_u32 s27, s{sW}, 8
    s_lshl_b32 s24, s27, 8
    s_add_u32 s24, s24, s2
    s_mul_i32 s40, s27, 12288
    s_add_u32 s40, s40, 10240
    v_lshrrev_b32 v2, 3, v0
    v_bfe_u32 v3, v0, 4, 2
    v_lshlrev_b32 v3, 1, v3
    v_and_b32 v4, 7, v0
    v_xor_b32 v3, v3, v4
    v_lshlrev_b32 v3, 4, v3
    v_lshlrev_b32 v9, 4, v0
    v_and_b32 v10, 3, v0
    v_lshlrev_b32 v10, 3, v10
    v_add_u32 v10, s40, v10""")
    l = k.label("pc2")
    k("s_getpc_b64 s[44:45]"); k.put(l)
    k(f"""s_sub_u32 s44, s44, {l}-code_start
    s_subb_u32 s45, s45, 0
    s_mov_b32 s46, code_end-code_start
    s_mov_b32 s47, 0x20000
    s_lshr_b32 s25, s2, 3
    s_lshl_b32 s26, s27, 5
    s_add_u32 s25, s25, s26
    s_lshl_b32 s25, s25, 10
    buffer_load_dwordx4 v[60:63], v9, s[44:47], s25 offen
    s_waitcnt lgkmcnt(0)
    s_mov_b32 s48, s38
    s_mov_b32 s49, s39
    s_mov_b32 s38, {D*F*2}
    s_mov_b32 s39, 0x20000
    s_mov_b32 s50, {D*F*2}
    s_mov_b32 s51, 0x20000
    s_cmp_ge_u32 s24, 400
    s_cbranch_scc1 {nou}
    s_cmp_ge_u32 s24, 240
    s_cbranch_scc1 {w2p}""")
    def init_words():
        z = k.label("z"); e = k.label("e")
        k(f"""s_lshl_b32 s28, s{sCL}, 3
        s_add_u32 s28, s28, s{sJ}
        s_cmp_eq_u32 s27, 0
        s_cbranch_scc0 {z}
        s_lshl_b32 s28, s28, 9
        s_add_u32 s28, s28, {ST}
        v_mov_b32 v12, -1
        v_mov_b32 v13, -1
        v_lshlrev_b32 v11, 3, v0
        buffer_store_dwordx2 v[12:13], v11, {WS}, s28 offen
        s_branch {e}""")
        k.put(z)
        k(f"""s_lshl_b32 s28, s{sCL}, 7
        s_lshl_b32 s29, s{sJ}, 4
        s_add_u32 s28, s28, s29
        s_add_u32 s28, s28, {FL}
        v_mov_b32 v12, 0
        v_lshrrev_b32 v11, 2, v0
        v_lshlrev_b32 v11, 12, v11
        v_and_b32 v13, 3, v0
        v_lshl_add_u32 v11, v13, 2, v11
        s_mov_b64 exec, 0xffff
        buffer_store_dword v12, v11, {WS}, s28 offen
        s_mov_b64 exec, -1""")
        k.put(e)
    k(f"""s_mul_i32 s25, s24, 2731
    s_lshr_b32 s25, s25, 16
    s_mul_i32 s26, s25, 24
    s_sub_u32 s26, s24, s26
    s_mul_i32 s28, s25, {64*3072}
    s_lshl_b32 s29, s26, 7
    s_add_u32 s28, s28, s29
    v_mul_u32_u24 v2, 3072, v2
    v_add_u32 v2, v2, v3
    s_mov_b32 m0, s40""")
    for i in range(8):
        k(f"buffer_load_dwordx4 v2, s[36:39], s28 offen lds")
        if i < 7: k(f"s_add_u32 s28, s28, {8*3072}\ns_add_u32 m0, m0, 1024")
    init_words()
    k("s_barrier")
    k(f"""v_bfe_u32 v5, v0, 2, 2
    v_lshrrev_b32 v6, 4, v0
    v_lshl_add_u32 v6, v6, 3, v5
    v_lshl_add_u32 v10, v6, 7, v10
    v_lshrrev_b32 v5, 1, v5
    v_lshl_add_u32 v10, v5, 5, v10
    v_xor_b32 v11, 32, v10
    v_xor_b32 v12, 64, v10
    v_xor_b32 v13, 96, v10
    s_lshl_b32 s26, s26, 2
    s_mul_i32 s25, s25, 6
    s_waitcnt vmcnt(0)""")
    for ph in range(4):
        for ka in range(2):
            for h in range(2):
                r = 16 + 8*ph + 4*ka + 2*h
                k(f"ds_read_b64_tr_b16 v[{r}:{r+1}], v{10 + (ph ^ (2*h))} offset:{512*h + 4096*ka}")
    for ph in range(4):
        k(f"""s_add_u32 s28, s26, {ph}
        s_mul_i32 s29, s28, 21846
        s_lshr_b32 s29, s29, 16
        s_mul_i32 s30, s29, 57
        s_add_u32 s28, s28, s30
        s_add_u32 s28, s28, s25
        s_lshl_b32 s28, s28, 10
        s_add_u32 s28, s28, {W1F}
        s_waitcnt lgkmcnt({12 - 4*ph})""")
        for ka in range(2):
            r = 16 + 8*ph + 4*ka
            k(f"buffer_store_dwordx4 v[{r}:{r+3}], v9, {WS}, s28 offen offset:{3072*ka}")
    k("s_endpgm")
    k.put(w2p)
    k(f"""s_sub_u32 s24, s24, 240
    s_mul_i32 s25, s24, 6554
    s_lshr_b32 s25, s25, 16
    s_mul_i32 s26, s25, 10
    s_sub_u32 s26, s24, s26
    s_mul_i32 s28, s25, {96*1280}
    s_lshl_b32 s29, s26, 7
    s_add_u32 s28, s28, s29
    v_mul_u32_u24 v2, 1280, v2
    v_add_u32 v2, v2, v3
    s_mov_b32 m0, s40""")
    for i in range(12):
        k(f"buffer_load_dwordx4 v2, s[48:51], s28 offen lds")
        if i < 11: k(f"s_add_u32 s28, s28, {8*1280}\ns_add_u32 m0, m0, 1024")
    init_words()
    k("s_barrier")
    k(f"""v_lshrrev_b32 v6, 2, v0
    v_lshl_add_u32 v10, v6, 7, v10
    v_bfe_u32 v5, v0, 3, 2
    v_lshl_add_u32 v10, v5, 5, v10
    v_xor_b32 v11, 32, v10
    v_xor_b32 v12, 64, v10
    v_xor_b32 v13, 96, v10
    s_lshl_b32 s26, s26, 2
    s_lshr_b32 s30, s25, 1
    s_mul_i32 s30, s30, 30
    s_and_b32 s31, s25, 1
    s_mul_i32 s32, s31, 10
    s_add_u32 s32, s32, s30
    s_mul_i32 s33, s31, 5
    s_add_u32 s33, s33, s30
    s_add_u32 s33, s33, 20
    s_waitcnt vmcnt(0)""")
    RR = [(0, 16), (48, 64), (32, 80)]
    for ph in range(4):
        for st in range(3):
            for h in range(2):
                r = 16 + 12*ph + 4*st + 2*h
                k(f"ds_read_b64_tr_b16 v[{r}:{r+1}], v{10 + ph} offset:{RR[st][h]*128}")
        k(f"""s_add_u32 s28, s26, {ph}
        s_mul_i32 s29, s28, 13108
        s_lshr_b32 s29, s29, 16
        s_mul_i32 s29, s29, 235
        s_add_u32 s28, s28, s29
        s_add_u32 s29, s28, s33
        s_add_u32 s28, s28, s32
        s_lshl_b32 s28, s28, 10
        s_lshl_b32 s29, s29, 10
        s_add_u32 s28, s28, {W2F}
        s_add_u32 s29, s29, {W2F}
        s_add_u32 s34, s28, 5120
        s_waitcnt lgkmcnt(0)""")
        for st, sr in enumerate((28, 34, 29)):
            r = 16 + 12*ph + 4*st
            k(f"buffer_store_dwordx4 v[{r}:{r+3}], v9, {WS}, s{sr} offen")
    k("s_endpgm")
    k.put(nou)
    init_words()
    k("s_barrier")
    k.put(done); k("s_endpgm")
    return k

def finish(L, path):
    seen = []
    for k in L:
        if k not in seen:
            seen.append(k); k.lines = hazard.fix(k.lines)
    o = build(L, path)
    o = o.replace(".text\n", ".text\n.p2align 8\ncode_start:\n", 1)
    o = o.replace('.section .rodata,"a"\n', ".p2align 8\n.type tbl,@object\ntbl:\n" + tables.emit(TBLOB) + "code_end:\n" + '.section .rodata,"a"\n', 1)
    open(path, "w").write(o)

if __name__ == "__main__":
    finish([gen_ka()], sys.argv[1])
```

```python
import re
REG = re.compile(r'(?<![\w.])([vas])(?:(\d+)|\[(\d+):(\d+)\])(?![\w])')
TRANS = ("v_exp_", "v_log_", "v_rcp_", "v_rsq_", "v_sqrt_", "v_sin_", "v_cos_")
def regs(op):
    out = set()
    for m in REG.finditer(op):
        t = m.group(1)
        if m.group(2) is not None: out.add((t, int(m.group(2))))
        else: out.update((t, i) for i in range(int(m.group(3)), int(m.group(4)) + 1))
    if re.search(r'(?<![\w])vcc(_lo|_hi)?(?![\w])', op): out.add(('s', 'vcc'))
    if re.search(r'(?<![\w])m0(?![\w])', op): out.add(('s', 'm0'))
    return out
def split_ops(s):
    ops, depth, cur = [], 0, ""
    for ch in s:
        if ch == '[': depth += 1
        if ch == ']': depth -= 1
        if ch == ',' and depth == 0: ops.append(cur.strip()); cur = ""
        else: cur += ch
    if cur.strip(): ops.append(cur.strip())
    return ops
class I:
    def __init__(self, line):
        self.line = line
        t = line.split(';')[0].strip()
        self.label = t[:-1] if t.endswith(':') else None
        self.dirn = t.startswith('.') and not self.label
        self.mn = t.split()[0] if t and not self.label else ""
        rest = t[len(self.mn):].strip() if self.mn else ""
        ops = split_ops(rest)
        self.ops = ops
        mn = self.mn
        self.mfma = mn.startswith("v_mfma")
        self.valu = mn.startswith("v_") and not self.mfma
        self.ds = mn.startswith("ds_"); self.vmem = mn.startswith(("buffer_", "global_"))
        self.salu = mn.startswith("s_")
        self.dpp = "_dpp" in mn or " row_" in t or "quad_perm" in t
        self.trans = mn.startswith(TRANS); self.dot = mn.startswith("v_dot")
        self.perm = mn.startswith("v_permlane"); self.rl = mn.startswith(("v_readlane", "v_readfirstlane"))
        self.ldsdma = self.vmem and re.search(r'\blds\b', t) is not None or mn.startswith("global_load_lds")
        self.store = self.vmem and ("store" in mn or "atomic" in mn)
        self.wide = self.store and ("x4" in mn or "x3" in mn)
        R = [regs(o) for o in ops]
        self.dst, self.src = set(), set()
        if self.mfma:
            self.dst = R[0]; self.a, self.b, self.c = R[1], R[2], R[3]; self.src = R[1] | R[2] | R[3]
            self.passes = 8 if "32x32" in mn else 4
        elif self.valu:
            self.dst = set(R[0]); rest_ = R[1:]
            if mn.startswith(("v_add_co", "v_sub_co", "v_addc_co", "v_subb_co", "v_div_scale", "v_mad_u64")): self.dst |= R[1]; rest_ = R[2:]
            for r in rest_: self.src |= r
            if self.perm: self.dst |= R[1]; self.src |= R[0]
            if mn.startswith(("v_fmac", "v_dot2c", "v_pk_fmac", "v_writelane")) or self.dpp: self.src |= R[0]
            if mn.startswith("v_cndmask") and len(ops) == 3: self.src.add(('s', 'vcc'))
        elif self.ds:
            if mn.startswith(("ds_read", "ds_bpermute", "ds_permute", "ds_swizzle")): self.dst = R[0]; [self.src.update(r) for r in R[1:]]
            else: [self.src.update(r) for r in R]
        elif self.vmem:
            if self.store or self.ldsdma: [self.src.update(r) for r in R]; self.data = (R[0] if mn.startswith("buffer") else R[1]) if self.store else set()
            else: self.dst = R[0]; [self.src.update(r) for r in R[1:]]
        elif self.salu and ops and not mn.startswith(("s_cmp", "s_cbranch", "s_branch", "s_waitcnt", "s_nop", "s_barrier", "s_endpgm", "s_sleep", "s_setprio", "s_bitcmp")):
            self.dst = R[0]; [self.src.update(r) for r in R[1:]]
        self.branch = mn.startswith(("s_cbranch", "s_branch"))
        self.target = ops[0] if self.branch else None
        self.slots = (int(ops[0], 0) + 1) if mn == "s_nop" else (0 if (self.label or self.dirn or not mn) else 1)
def need(p, c):
    n = 0
    vd = {r for r in p.dst if r[0] in 'va'}; sd = {r for r in p.dst if r[0] == 's'}
    if p.valu:
        if c.mfma and vd & c.src: n = max(n, 2)
        if c.valu and (c.dpp or c.perm) and vd & c.src: n = max(n, 2)
        if c.rl and vd & c.src: n = max(n, 1)
        if p.trans and c.valu and not c.trans and vd & c.src: n = max(n, 1)
        if sd:
            if c.valu and sd & c.src: n = max(n, 4 if c.mn.startswith(("v_readlane", "v_writelane")) else 2)
            if c.vmem and sd & c.src: n = max(n, 5)
            if c.salu and sd & c.src: n = max(n, 1)
        if p.dot and (c.valu or c.mfma or c.vmem or c.ds) and vd & (c.src | c.dst):
            same_c = c.mn == p.mn and len(c.ops) >= 3 and not (vd & (regs(c.ops[1]) | regs(c.ops[2])))
            if not same_c: n = max(n, 3)
    if p.mfma:
        big = p.passes == 8
        if c.mfma:
            if p.dst & (c.a | c.b): n = max(n, 12 if big else 8)
            if p.dst & c.c and not (p.dst == c.c and c.passes == p.passes): n = max(n, 10 if big else 6)
            if p.dst & c.dst and not (p.dst & c.c): n = max(n, 10 if big else 6)
        elif (c.valu or c.vmem or c.ds) and p.dst & (c.src | c.dst): n = max(n, 12 if big else 8)
        if c.valu and p.c & c.dst: n = max(n, 7 if big else 3)
    if p.wide and p.data & c.dst: n = max(n, 2 if c.valu else 1)
    if p.salu and ('s', 'm0') in p.dst and c.ldsdma: n = max(n, 1)
    return n
def fix(lines):
    ins = [I(l) for l in lines]
    WIN = 14
    entry = {}
    for rnd in range(3):
        out, hist = [], []
        alts = []
        for i in ins:
            if i.label:
                alts = [h for h in alts if h] + [list(h) for h in entry.get(i.label, [])]
                out.append(i); continue
            if i.dirn or not i.mn:
                out.append(i); continue
            req = 0
            for h in [hist] + alts:
                for (p, age) in h:
                    req = max(req, need(p, i) - age)
            if req > 0 and i.mn != "s_nop":
                nop = I("    s_nop %d" % (req - 1)); out.append(nop)
                hist = [(p, a + req) for p, a in hist]; alts = [[(p, a + req) for p, a in h] for h in alts]
            out.append(i)
            s = i.slots
            hist = [(p, a + s) for p, a in hist if a + s < WIN] + [(i, 0)]
            alts = [[(p, a + s) for p, a in h if a + s < WIN] for h in alts]; alts = [h for h in alts if h]
            if i.branch:
                entry.setdefault(i.target, [])
                snap = [x for h in [hist] + alts for x in h]
                entry[i.target] = (entry[i.target] + [snap])[-8:]
                if i.mn == "s_branch": hist, alts = [], []
            if i.mn == "s_endpgm": hist, alts = [], []
        ins = out
    return [i.line for i in ins]
```

```python
import numpy as np
def f16b(a): return np.asarray(a, np.float64).astype(np.float16).view(np.uint16)
lane = np.arange(64); n_ = lane & 15; g_ = lane >> 4
def t_s1():
    out = np.zeros((4, 2, 64, 8))
    for nt in range(4):
        for ka in range(2):
            for i in range(8):
                rho = 32*ka + 16*(i >> 2) + 4*g_ + (i & 3)
                s1 = (rho >> 5) + 2*(rho & 31)
                row = 16*nt + n_; c = row >> 1; ri = row & 1
                v = np.where(ri == 0, np.cos(2*np.pi*c*s1/64), -np.sin(2*np.pi*c*s1/64))
                v = np.where((c == 0) & (ri == 1), np.cos(np.pi*s1), v)
                out[nt, ka, :, i] = v
    return f16b(out)
def t_ha():
    out = np.zeros((2, 64, 8))
    for T in range(2):
        for i in range(8):
            e1 = 8*T + (n_ >> 1); ri = n_ & 1; pq = i >> 2; d1 = 4*(i & 3) + g_
            th = 2*np.pi*d1*e1/16
            out[T, :, i] = np.where(ri == 0, np.sin(th) if pq else np.cos(th), np.cos(th) if pq else -np.sin(th))
    return f16b(out)
def t_hb():
    out = np.zeros((3, 3, 64, 8))
    for tp in range(3):
        for ks in range(3):
            for i in range(8):
                s = 16*ks + 4*g_ + (i >> 1); ri = i & 1
                d2 = (s & ~3) + 2*(s & 1) + ((s >> 1) & 1)
                e2 = 16*tp + n_
                th = 2*np.pi*d2*e2/40
                v = np.sin(th) if ri else np.cos(th)
                out[tp, ks, :, i] = np.where((s < 40) & (e2 < 40), v, 0)
    return f16b(out)
def t_tw():
    out = np.zeros((10, 2, 4, 2, 2, 2, 2), np.float32)
    for q in range(10):
        for rb in range(2):
            for g in range(4):
                for p in range(2):
                    for T in range(2):
                        for u in range(2):
                            ph = 2*np.pi*(4*q + 2*p + rb)*(8*T + 2*g + u)/640
                            out[q, rb, g, p, T, u] = (np.cos(ph), np.sin(ph))
    return out
def blob():
    parts = [t_s1(), t_ha(), t_hb(), t_tw()]
    offs, b = [], b""
    for p in parts:
        offs.append(len(b)); b += np.ascontiguousarray(p).tobytes()
    return offs, b
def emit(b):
    w = np.frombuffer(b, np.uint32)
    return "\n".join(".long " + ",".join("0x%x" % x for x in w[i:i+8]) for i in range(0, len(w), 8)) + "\n"
```

```python
from fnet import *
LV, LHB, LX = 98304, 118912, 81920
sMODE = 59
def poll(k, addr_s, nl, target, vt):
    lp, ok = k.label("poll"), k.label("ok")
    k(f"s_mov_b32 s57, 0")
    k.put(lp)
    k(f"""buffer_load_dword v{vt+1}, v{vt}, {WS}, s{addr_s} offen sc1
    s_add_u32 s57, s57, 1
    s_cmp_gt_u32 s57, 0x80000
    s_cbranch_scc1 {ok}
    s_waitcnt vmcnt(0)
    v_cmp_gt_u32 vcc, {target}, v{vt+1}
    s_cbranch_vccnz {lp}""")
    k.put(ok)
    k("s_waitcnt vmcnt(0)")
def sync(k, vm, kind, vt, between=None):
    vm.drain(); k("s_barrier")
    sk = k.label("nf")
    if between: between()
    k(f"""s_cmp_lg_u32 s{sW}, 0
    s_cbranch_scc1 {sk}
    s_lshl_b32 s24, s{sMODE}, 13
    s_lshl_b32 s25, s{sCL}, 7
    s_add_u32 s24, s24, s25
    s_add_u32 s24, s24, {FL + 4096*kind}
    s_lshl_b32 s25, s{sJ}, 4
    s_add_u32 s25, s25, s24
    v_mov_b32 v{vt}, 0
    v_mov_b32 v{vt+1}, 1
    s_mov_b64 exec, 1
    buffer_store_dword v{vt+1}, v{vt}, {WS}, s25 offen sc1
    s_mov_b64 exec, -1
    v_and_b32 v{vt}, 7, v0
    v_lshlrev_b32 v{vt}, 4, v{vt}""")
    poll(k, 24, 8, 1, vt)
    k.put(sk)
    k("s_barrier")

def gen_kb(stamps=False, stop=None):
    k = K("kb_kernel", 256, 256, lds=160*1024, vgpr=256, agpr=256)
    kc = K("kc_kernel", 256, 256, lds=160*1024, vgpr=256, agpr=256)
    kc(f"s_mov_b32 s{sMODE}, 1\ns_branch kbc_common")
    k(f"s_mov_b32 s{sMODE}, 0"); k.put("kbc_common")
    done = k.label("done")
    ids(k, done)
    k("s_load_dwordx2 s[8:9], s[0:1], 0\ns_load_dwordx2 s[12:13], s[0:1], 64\ns_load_dwordx2 s[4:5], s[0:1], 80")
    stamp(k, 0, stamps)
    tblsrd(k); ids2(k)
    vm = VM(k)
    k(f"""s_mov_b32 s6, 0x10000000
    s_mov_b32 s7, 0x20000
    s_mov_b32 s11, 0x20000
    s_mov_b32 s15, 0x20000
    s_lshr_b32 s24, s{sJ}, 2
    s_sub_u32 s25, 32, s{sSIG}
    s_and_b32 s25, s25, 31
    s_cmp_eq_u32 s24, 0
    s_cselect_b32 s25, s{sSIG}, s25
    s_mul_i32 s25, s25, 81920
    s_mul_i32 s26, s{sW}, 3
    s_lshl_b32 s27, s{sW}, 1
    s_add_u32 s27, s27, 2
    s_cmp_lt_u32 s{sW}, 2
    s_cselect_b32 s26, s26, s27
    s_lshl_b32 s27, s26, 13
    s_add_u32 s25, s25, s27
    s_mul_i32 s27, s{sMODE}, {U1 - U0}
    s_add_u32 s25, s25, s27
    s_lshl_b32 s28, s26, 9
    s_mul_i32 s29, s{sW}, 24576
    v_lshrrev_b32 v1, 3, v0
    v_lshlrev_b32 v1, 7, v1
    v_bfe_u32 v2, v0, 4, 2
    v_lshlrev_b32 v2, 1, v2
    v_and_b32 v3, 7, v0
    v_xor_b32 v2, v2, v3
    v_lshl_add_u32 v1, v2, 4, v1
    v_lshlrev_b32 v3, 4, v0
    v_bfe_u32 v2, v0, 3, 1
    v_lshlrev_b32 v2, 2, v2
    v_lshrrev_b32 v4, 4, v0
    v_add_u32 v2, v2, v4
    v_lshlrev_b32 v2, 6, v2
    s_mov_b32 m0, s29
    s_waitcnt lgkmcnt(0)""")
    S2C, HAC, TW, RES, HBC, OP, DD, PK, TMP, HD, WO, TT = 16, 24, 32, 80, 92, 128, 160, 176, 184, 186, 202, 210
    def udma(i):
        for x in range(8):
            if x == 4: k("s_add_u32 s25, s25, 4096\ns_add_u32 m0, m0, 4096")
            vm.op(f"buffer_load_dwordx4 v1, {WS}, s25 offen offset:{1024*(x & 3)} lds", ("u", i))
        k("s_add_u32 s25, s25, 4096\ns_add_u32 m0, m0, 4096")
    def twl(i):
        o = T_TW + 512*i
        k(f"s_add_u32 s30, s28, {o}")
        for x in range(4):
            vm.op(f"buffer_load_dwordx4 v[{TW+16*i+4*x}:{TW+16*i+4*x+3}], v2, {TS}, s30 offen offset:{16*x}", ("tw", i))
    udma(0)
    k(f"s_mov_b32 s30, {T_HA}")
    for T in range(2): vm.op(f"buffer_load_dwordx4 v[{HAC+4*T}:{HAC+4*T+3}], v3, {TS}, s30 offen offset:{1024*T}", "ha")
    twl(0); udma(1); twl(1)
    k(f"s_cmp_lt_u32 s{sW}, 2\ns_cselect_b32 s25, s25, {OOB}")
    udma(2); twl(2)
    k(f"s_lshl_b32 s30, s{sW}, 11\ns_add_u32 m0, s30, {LHB}\ns_add_u32 s30, s30, {T_HB}")
    for x in range(2): vm.op(f"buffer_load_dwordx4 v3, {TS}, s30 offen offset:{1024*x} lds", "hb")
    k(f"s_mov_b32 m0, {LHB + 8192}\ns_mov_b32 s30, {T_HB + 8192}")
    vm.op(f"buffer_load_dwordx4 v3, {TS}, s30 offen lds", "hb")
    m0l, m1l = k.label("m0"), k.label("m1")
    k(f"""s_mul_i32 s33, s{sCL}, 81920
    s_lshl_b32 s34, s{sJ}, 2
    s_add_u32 s34, s34, s{sW}
    s_mul_i32 s34, s34, 2560
    s_add_u32 s33, s33, s34
    s_and_b32 s35, s{sJ}, 3
    s_lshl_b32 s35, s35, 9
    s_lshl_b32 s36, s24, 5
    s_add_u32 s35, s35, s36
    s_add_u32 s35, s35, s{sSIG}
    s_cmp_eq_u32 s{sMODE}, 0
    s_cbranch_scc0 {m1l}
    s_lshl_b32 s31, s{sW}, 7
    s_add_u32 s31, s31, s35
    s_mul_i32 s31, s31, 1280
    s_add_u32 s32, s31, 81920
    s_mov_b32 s10, {S*D*2}
    s_mov_b32 s12, s4
    s_mov_b32 s13, s5
    s_mov_b32 s14, 0x10000000
    s_branch {m0l}""")
    k.put(m1l)
    k(f"""s_add_u32 s31, s33, {X2}
    s_add_u32 s32, s31, 1280
    s_mov_b32 s8, s4
    s_mov_b32 s9, s5
    s_mov_b32 s10, 0x10000000
    s_mov_b32 s14, {S*D*2}""")
    k.put(m0l)
    k(f"""v_and_b32 v15, 15, v0
    v_lshlrev_b32 v11, 5, v15
    v_lshl_add_u32 v13, v4, 3, v11
    v_cmp_gt_u32 vcc, 8, v15
    v_mov_b32 v12, {OOB}
    v_lshrrev_b32 v14, 5, v0
    v_lshl_add_u32 v14, v14, 4, v11
    v_mov_b32 v11, v13
    v_cndmask_b32 v12, v12, v11, vcc
    v_bfe_u32 v13, v0, 4, 1
    v_mul_u32_u24 v13, 1280, v13
    v_add_u32 v13, v13, v14
    v_mov_b32 v14, {OOB}
    v_cndmask_b32 v14, v14, v13, vcc
    v_cndmask_b32 v212, 0, 1.0, vcc""")
    for R in range(2):
        for tp in range(3):
            r = RES + 6*R + 2*tp
            vm.op(f"buffer_load_dwordx2 v[{r}:{r+1}], v{12 if tp == 2 else 11}, {XS}, s{31+R} offen offset:{512*tp}", "res")
    k(f"""s_lshl_b32 s37, s{sJ}, 2
    s_add_u32 s37, s37, s{sW}
    s_mul_i32 s37, s37, 61440
    s_add_u32 s38, s37, {W2F}
    s_add_u32 s37, s37, {W1F}""")
    w1n = [0]
    def w1load(n):
        for _ in range(n):
            f = w1n[0]; w1n[0] += 1
            vm.op(f"buffer_load_dwordx4 a[{4*f}:{4*f+3}], v3, {WS}, s37 offen offset:{1024*(f & 3)}", "w1")
            if f & 3 == 3: k("s_add_u32 s37, s37, 4096")
    w1load(16)
    k(f"""v_and_b32 v5, 7, v0
    v_lshl_add_u32 v5, v5, 6, s35
    v_cvt_f32_u32 v5, v5
    v_mul_f32 v5, 0x3a000000, v5
    v_lshlrev_b32 v6, 1, v4
    v_cvt_f32_u32 v6, v6
    v_bfe_u32 v7, v0, 3, 1
    v_cvt_f32_u32 v7, v7
    v_mul_f32 v7, 0x3e800000, v7
    v_fmac_f32 v7, v5, v6
    s_cmp_eq_u32 s{sSIG}, 0
    s_cselect_b32 s39, 1, 0
    s_and_b32 s40, s39, s24
    s_cmp_eq_u32 s24, 0
    s_cselect_b32 s42, 0x3e000000, 0xbe000000
    s_cmp_eq_u32 s39, 1
    s_cselect_b32 s42, 0, s42
    s_cmp_eq_u32 s40, 1
    s_cselect_b32 s41, 0, 0x3e000000
    s_cselect_b32 s42, 0x3e000000, s42
    s_cselect_b32 s43, 0, 0xbe800000""".replace("s_cselect_b32 s42, 0x3e000000, 0xbe000000", "s_mov_b32 s42, 0xbe000000\n    s_cselect_b32 s42, 0x3e000000, s42"))
    import struct
    fl = lambda x: "0x%08x" % struct.unpack("<I", struct.pack("<f", x))[0]
    for ka in range(2):
        for h in range(2):
            for u in range(2):
                c = 16*ka + 8*h + u; t = OP + 4*(4*ka + 2*h + u)
                k(f"v_fmamk_f32 v{t}, v5, {fl(c)}, v7\nv_add_f32 v{t+1}, s43, v{t}\nv_cos_f32 v{t}, v{t}\nv_cos_f32 v{t+1}, v{t+1}")
    for x in range(8):
        t = OP + 4*x
        k(f"v_mul_f32 v{t}, s41, v{t}\nv_mul_f32 v{t+1}, s42, v{t+1}\nv_cvt_pk_f16_f32 v{S2C+x}, v{t}, v{t+1}")
    k(f"""v_lshrrev_b32 v5, 2, v0
    v_lshlrev_b32 v5, 7, v5
    v_and_b32 v6, 3, v0
    v_lshl_add_u32 v5, v6, 3, v5
    v_bfe_u32 v6, v0, 3, 2
    v_lshl_add_u32 v5, v6, 5, v5
    v_add_u32 v5, s29, v5
    v_and_b32 v8, 7, v0
    v_mul_u32_u24 v8, 2576, v8
    v_mul_u32_u24 v9, 320, v4
    v_add_u32 v8, v8, v9
    v_bfe_u32 v9, v0, 3, 1
    v_lshl_add_u32 v8, v9, 3, v8
    s_lshl_b32 s30, s26, 4
    s_add_u32 s30, s30, {LV}
    v_add_u32 v8, s30, v8
    s_mul_i32 s30, s{sW}, 5152
    s_add_u32 s30, s30, {LV}
    v_mul_u32_u24 v9, 160, v15
    v_add_u32 v9, s30, v9
    v_bfe_u32 v10, v0, 4, 1
    v_lshl_add_u32 v10, v10, 4, v9
    v_lshl_add_u32 v9, v4, 4, v9
    v_xor_b32 v6, 64, v5
    v_xor_b32 v7, 96, v5
    v_mov_b32 v4, v5
    v_xor_b32 v5, 32, v5""")
    stamp(k, 1, stamps)
    for i in range(3):
        vm.wait(("tw", i), "ha") if i == 0 else vm.wait(("tw", i))
        sk = None
        if i == 2:
            sk = k.label("q2"); k(f"s_cmp_ge_u32 s{sW}, 2\ns_cbranch_scc1 {sk}")
        for t in range(4):
            for ka in range(2):
                for h in range(2):
                    r = OP + 8*t + 4*ka + 2*h
                    k(f"ds_read_b64_tr_b16 v[{r}:{r+1}], v{4+t} offset:{8192*i + 4096*ka + 2048*h}")
        if i < 2: w1load(12)
        for t in range(4):
            for ka in range(2):
                r = OP + 8*t + 4*ka
                k(f"s_waitcnt lgkmcnt({14 - 4*t - 2*ka})")
                c = "0" if ka == 0 else f"v[{DD+4*t}:{DD+4*t+3}]"
                k(f"v_mfma_f32_16x16x32_f16 v[{DD+4*t}:{DD+4*t+3}], v[{r}:{r+3}], v[{S2C+4*ka}:{S2C+4*ka+3}], {c}")
        for hp in range(2):
            for r in range(4):
                k(f"v_cvt_pk_f16_f32 v{PK+2*r+hp}, v{DD+8*hp+r}, v{DD+8*hp+4+r}")
        for p in range(2):
            for hp in range(2): k(f"v_mov_b32 v{TMP+hp}, v{PK+4*p+hp}")
            for hp in range(2): k(f"v_mov_b32_dpp v{PK+4*p+hp}, v{PK+4*p+2+hp} row_ror:8 row_mask:0xf bank_mask:0xc")
            for hp in range(2): k(f"v_mov_b32_dpp v{PK+4*p+2+hp}, v{TMP+hp} row_ror:8 row_mask:0xf bank_mask:0x3")
        for p in range(2):
            for T in range(2):
                d = HD + 8*p + 4*T
                k(f"v_mfma_f32_16x16x32_f16 v[{d}:{d+3}], v[{HAC+4*T}:{HAC+4*T+3}], v[{PK+4*p}:{PK+4*p+3}], 0")
        for p in range(2):
            for T in range(2):
                for u in range(2):
                    d = HD + 8*p + 4*T + 2*u; w = TW + 16*i + 8*p + 4*T + 2*u; t = DD + 2*(4*p + 2*T + u)
                    k(f"v_pk_mul_f32 v[{t}:{t+1}], v[{d}:{d+1}], v[{w}:{w+1}] op_sel_hi:[1,0]")
                    k(f"v_pk_fma_f32 v[{t}:{t+1}], v[{d}:{d+1}], v[{w}:{w+1}], v[{t}:{t+1}] op_sel:[1,1,0] op_sel_hi:[0,1,1] neg_hi:[1,0,0]")
                    k(f"v_cvt_pk_f16_f32 v{WO+2*(2*T+u)+p}, v{t}, v{t+1}")
        for T in range(2):
            for u in range(2):
                r = WO + 2*(2*T + u)
                k(f"ds_write_b64 v8, v[{r}:{r+1}] offset:{(8*T + u)*160 + 16*i}")
        if sk: k.put(sk)
    vm.wait("hb")
    w1load(20)
    stamp(k, 2, stamps)
    k("s_waitcnt lgkmcnt(0)\ns_barrier")
    k(f"v_add_u32 v213, {LHB}, v3")
    order = []
    for ks in range(3):
        for R in range(2):
            r = OP + 12*R + 4*ks
            k(f"ds_read_b128 v[{r}:{r+3}], v{10 if ks == 2 else 9} offset:{2576*R + 64*ks}")
        for tp in range(3):
            r = HBC + 4*(3*tp + ks)
            k(f"ds_read_b128 v[{r}:{r+3}], v213 offset:{1024*(3*tp + ks)}")
    for ks in range(3):
        for tp in range(3):
            k(f"s_waitcnt lgkmcnt({12 - 5*ks - tp})")
            for R in range(2):
                d = DD + 12*R + 4*tp; a = OP + 12*R + 4*ks; b = HBC + 4*(3*tp + ks)
                c = "0" if ks == 0 else f"v[{d}:{d+3}]"
                k(f"v_mfma_f32_16x16x32_f16 v[{d}:{d+3}], v[{a}:{a+3}], v[{b}:{b+3}], {c}")
    vm.wait("res")
    TU = 32
    for x in range(12): k(f"v_lshlrev_b32 v{TU+2*x}, 16, v{RES+x}\nv_and_b32 v{TU+2*x+1}, 0xffff0000, v{RES+x}")
    k("s_mov_b32 s44, 0x41000000")
    for x in range(12):
        k(f"v_pk_fma_f32 v[{DD+2*x}:{DD+2*x+1}], v[{DD+2*x}:{DD+2*x+1}], s[44:45], v[{TU+2*x}:{TU+2*x+1}] op_sel_hi:[1,0,1]")
    Q = 56
    def packstore(base, tagname):
        for tp in range(3):
            for R in range(2):
                for x in range(2):
                    s = DD + 12*R + 4*tp + 2*x
                    k(f"v_cvt_pk_bf16_f32 v{Q+4*tp+2*R+x}, v{s}, v{s+1}")
        k(f"s_add_u32 s30, s33, {base}")
        for tp in range(3):
            for x in range(2): k(f"v_permlane16_swap_b32 v{Q+4*tp+x}, v{Q+4*tp+2+x}")
            vm.op(f"buffer_store_dwordx4 v[{Q+4*tp}:{Q+4*tp+3}], v{14 if tp == 2 else 13}, {WS}, s30 offen offset:{512*tp} sc1", tagname)
    def reduce2(a, b, t):
        k(f"""v_permlane32_swap_b32 v{a}, v{b}
        v_add_f32 v{a}, v{a}, v{b}
        v_mov_b32 v{t}, v{a}
        v_permlane16_swap_b32 v{t}, v{a}
        v_add_f32 v{a}, v{a}, v{t}""")
        for m in ("quad_perm:[1,0,3,2]", "quad_perm:[2,3,0,1]", "row_half_mirror", "row_mirror"):
            k(f"v_add_f32_dpp v{a}, v{a}, v{a} {m} row_mask:0xf bank_mask:0xf")
    SA = 70
    for R in range(2):
        k(f"v_pk_add_f32 v[{SA+2*R}:{SA+2*R+1}], v[{DD+12*R}:{DD+12*R+1}], v[{DD+12*R+2}:{DD+12*R+3}]")
    for x in range(2, 6):
        for R in range(2):
            k(f"v_pk_add_f32 v[{SA+2*R}:{SA+2*R+1}], v[{SA+2*R}:{SA+2*R+1}], v[{DD+12*R+2*x}:{DD+12*R+2*x+1}]")
    for R in range(2): k(f"v_add_f32 v{SA+2*R}, v{SA+2*R}, v{SA+2*R+1}")
    reduce2(SA, SA + 2, SA + 1)
    k(f"v_mul_f32 v{SA}, 0x3acccccd, v{SA}")
    packstore(X1, "x1st")
    k(f"v_readlane_b32 s46, v{SA}, 0\nv_readlane_b32 s48, v{SA}, 32")
    for R in range(2):
        for x in range(6):
            d = DD + 12*R + 2*x
            if x < 4: k(f"v_pk_add_f32 v[{d}:{d+1}], v[{d}:{d+1}], s[{46+2*R}:{47+2*R}] op_sel_hi:[1,0] neg_lo:[0,1] neg_hi:[0,1]")
            else: k(f"v_pk_fma_f32 v[{d}:{d+1}], v[212:213], s[{46+2*R}:{47+2*R}], v[{d}:{d+1}] op_sel_hi:[0,0,1] neg_lo:[0,1,0] neg_hi:[0,1,0]")
    for R in range(2):
        k(f"v_pk_mul_f32 v[{SA+2*R}:{SA+2*R+1}], v[{DD+12*R}:{DD+12*R+1}], v[{DD+12*R}:{DD+12*R+1}]")
    for x in range(1, 6):
        for R in range(2):
            d = DD + 12*R + 2*x
            k(f"v_pk_fma_f32 v[{SA+2*R}:{SA+2*R+1}], v[{d}:{d+1}], v[{d}:{d+1}], v[{SA+2*R}:{SA+2*R+1}]")
    for R in range(2): k(f"v_add_f32 v{SA+2*R}, v{SA+2*R}, v{SA+2*R+1}")
    reduce2(SA, SA + 2, SA + 1)
    k(f"v_mov_b32 v{SA+1}, 0x3727c5ac\nv_fmac_f32 v{SA+1}, 0x3acccccd, v{SA}\nv_rsq_f32 v{SA}, v{SA+1}\ns_nop 0")
    k(f"v_readlane_b32 s46, v{SA}, 0\nv_readlane_b32 s48, v{SA}, 32")
    for R in range(2):
        for x in range(6):
            d = DD + 12*R + 2*x
            k(f"v_pk_mul_f32 v[{d}:{d+1}], v[{d}:{d+1}], s[{46+2*R}:{47+2*R}] op_sel_hi:[1,0]")
    Q = 72
    packstore(XN, "xnst")
    stamp(k, 3, stamps)
    if stop == "p2":
        stamp_flush(k, 4, 1, stamps); k.put(done); k("s_endpgm"); return k, kc
    vD, vA0, vA1, v8l, RING, ACC, PKO = 1, 4, 5, 2, 8, 24, 48
    W2V = 64
    k(f"""v_lshrrev_b32 v6, 3, v0
    v_and_b32 v7, 7, v0
    v_xor_b32 v7, v7, v6
    v_mul_u32_u24 v{vD}, 1280, v6
    v_lshl_add_u32 v{vD}, v7, 4, v{vD}
    v_lshrrev_b32 v6, 4, v0
    v_and_b32 v7, 7, v0
    v_xor_b32 v6, v6, v7
    v_lshlrev_b32 v6, 4, v6
    v_lshl_add_u32 v6, v7, 7, v6
    v_bfe_u32 v7, v0, 3, 1
    v_lshl_add_u32 v{vA0}, v7, 10, v6
    v_xor_b32 v{vA1}, 64, v{vA0}
    v_lshlrev_b32 v{v8l}, 3, v0
    s_lshr_b32 s26, s{sW}, 1
    s_and_b32 s27, s{sW}, 1
    s_mul_i32 s28, s{sCL}, 81920
    s_mul_i32 s29, s26, 10240
    s_add_u32 s28, s28, s29
    s_mul_i32 s29, s27, 640
    s_add_u32 s28, s28, s29
    s_add_u32 s28, s28, {XN}
    s_mul_i32 s29, s27, 10240
    s_lshl_b32 s26, s26, 10
    s_add_u32 s29, s29, s26
    s_lshl_b32 s40, s{sCL}, 3
    s_add_u32 s41, s40, s{sJ}
    s_mul_i32 s41, s41, 24576
    s_add_u32 s41, s41, {H}
    s_lshl_b32 s42, s{sW}, 9
    s_add_u32 s42, s42, s41
    s_add_u32 s42, s42, 4096
    s_lshl_b32 s43, s{sW}, 10
    s_add_u32 s41, s41, s43""")
    sync(k, vm, 0, 6)
    stamp(k, 4, stamps)
    k("s_mov_b32 m0, s29")
    for mu in range(4):
        for i in range(5):
            vm.op(f"buffer_load_dwordx4 v{vD}, {WS}, s28 offen sc1 lds", ("xn", mu))
            if i < 4: k("s_add_u32 s28, s28, 128\ns_add_u32 m0, m0, 2048")
            elif mu < 3: k(f"s_add_u32 s28, s28, {20480 - 512}\ns_add_u32 m0, m0, {20480 - 8192}")
    w2n = [0]
    def w2reg(f): return f"v[{W2V+4*f}:{W2V+4*f+3}]" if f < 48 else f"a[{4*(f-48)}:{4*(f-48)+3}]"
    def w2load(n):
        for _ in range(n):
            f = w2n[0]; w2n[0] += 1
            vm.op(f"buffer_load_dwordx4 {w2reg(f)}, v3, {WS}, s38 offen offset:{1024*(f & 3)}", "w2")
            if f & 3 == 3: k("s_add_u32 s38, s38, 4096")
    def xread(s):
        mu, ka = divmod(s, 20); r = RING + 4*(s & 3)
        if mu == 3 and ka == 0: k(f"v_add_u32 v{vA0}, 61440, v{vA0}\nv_add_u32 v{vA1}, 61440, v{vA1}")
        k(f"ds_read_b128 v[{r}:{r+3}], v{vA1 if ka & 1 else vA0} offset:{(20480*mu if mu < 3 else 0) + 2048*(ka >> 1)}")
    def g1_epi(mu):
        a = ACC + 12*(mu & 1); ops = []
        for x in range(6): ops.append(f"v_cvt_pk_bf16_f32 v{PKO+x}, v{a+2*x}, v{a+2*x+1}")
        for x in range(6): ops.append(f"v_pk_max_i16 v{PKO+x}, v{PKO+x}, 0")
        ops.append(("vm", f"buffer_store_dwordx4 v[{PKO}:{PKO+3}], v3, {WS}, s41 offen sc1"))
        ops.append(("vm", f"buffer_store_dwordx2 v[{PKO+4}:{PKO+5}], v{v8l}, {WS}, s42 offen sc1"))
        ops.append("s_add_u32 s41, s41, 6144\ns_add_u32 s42, s42, 6144")
        return ops
    vm.wait(("xn", 0)); k("s_barrier")
    stamp(k, 5, stamps)
    for s in range(3): xread(s)
    epi = []
    for s in range(80):
        mu, ka = divmod(s, 20)
        if ka == 16 and mu < 3:
            vm.wait(("xn", mu + 1)); k("s_barrier")
        if s + 3 < 80: xread(s + 3)
        k(f"s_waitcnt lgkmcnt({min(3, 79 - s)})")
        r = RING + 4*(s & 3)
        for nu in range(3):
            d = ACC + 12*(mu & 1) + 4*nu; f = 3*ka + nu
            c = "0" if ka == 0 else f"v[{d}:{d+3}]"
            k(f"v_mfma_f32_16x16x32_bf16 v[{d}:{d+3}], a[{4*f}:{4*f+3}], v[{r}:{r+3}], {c}")
            if nu == 0 and s < 48: w2load(1)
            if nu >= 1 and ka >= 3 and epi:
                o = epi.pop(0)
                if isinstance(o, tuple): vm.op(o[1], "hst")
                else: k(o)
        if ka == 19: epi = g1_epi(mu)
    for o in epi:
        if isinstance(o, tuple): vm.op(o[1], "hst")
        else: k(o)
    stamp(k, 6, stamps)
    if stop == "g1":
        stamp_flush(k, 7, 1, stamps); k.put(done); k("s_endpgm"); return k, kc
    GA, HR = 48, 128
    vH8, vPW, vRS, vOS, RS2, S1C = 1, 4, 5, 6, 8, 18
    k(f"""v_add_u32 v{vH8}, 4096, v{v8l}
    s_lshl_b32 s26, s{sW}, 1
    s_add_u32 s26, s26, s40
    s_mul_i32 s26, s26, 24576
    s_add_u32 s26, s26, {H}
    s_add_u32 s27, s26, 24576
    v_and_b32 v7, 15, v0
    v_lshrrev_b32 v30, 4, v0
    v_lshlrev_b32 v30, 3, v30
    v_mul_u32_u24 v{vRS}, 1280, v7
    v_add_u32 v{vRS}, v{vRS}, v30
    s_mul_i32 s28, s{sCL}, 81920
    s_mul_i32 s29, s{sW}, 20480
    s_add_u32 s28, s28, s29
    s_mul_i32 s29, s{sJ}, 160
    s_add_u32 s28, s28, s29
    s_add_u32 s31, s28, {X2}
    s_add_u32 s28, s28, {X1}
    s_lshr_b32 s32, s{sW}, 1
    s_lshl_b32 s32, s32, 5
    s_and_b32 s33, s{sW}, 1
    s_lshl_b32 s33, s33, 10
    s_add_u32 s32, s32, s33
    s_add_u32 s32, s32, s{sSIG}
    s_mul_i32 s32, s32, 1280
    s_add_u32 s32, s32, s29
    s_cmp_eq_u32 s{sMODE}, 0
    s_cselect_b32 s31, s31, s32
    s_mov_b32 s32, 81920
    s_cselect_b32 s32, 1280, s32
    v_mul_lo_u32 v{vOS}, v7, s32
    v_add_u32 v{vOS}, v{vOS}, v30
    s_lshl_b32 s33, s{sW}, 11""")
    sync(k, vm, 1, 32, between=lambda: w2load(12))
    stamp(k, 7, stamps)
    vm.q = ["w2"]*12
    def hload(mu, ks):
        pi, kp = divmod(ks, 6); r = HR + 48*(mu & 1) + 4*ks
        if kp < 4: vm.op(f"buffer_load_dwordx4 a[{r}:{r+3}], v3, {WS}, s{26+pi} offen offset:{1024*kp} sc1", ("h", mu, ks))
        else:
            for x in range(2):
                vm.op(f"buffer_load_dwordx2 a[{r+2*x}:{r+2*x+1}], v{vH8}, {WS}, s{26+pi} offen offset:{512*(2*(kp-4)+x)} sc1", ("h", mu, ks))
        if ks == 11: k("s_add_u32 s26, s26, 6144\ns_add_u32 s27, s27, 6144")
    for mu in range(2):
        for ks in range(12): hload(mu, ks)
    for de in range(5): vm.op(f"buffer_load_dwordx2 v[{RS2+2*de}:{RS2+2*de+1}], v{vRS}, {WS}, s28 offen offset:{32*de} sc1", "rs2")
    for ka in range(2): vm.op(f"buffer_load_dwordx4 v[{S1C+4*ka}:{S1C+4*ka+3}], v3, {TS}, s33 offen offset:{T_S1 + 1024*ka}", "s1c")
    def pw_addr(mu):
        k(f"s_sub_u32 s34, s{sW}, {mu+1}\ns_and_b32 s34, s34, 3\ns_mul_i32 s34, s34, 5120\ns_add_u32 s34, s34, {20480*mu}\nv_add_u32 v{vPW}, s34, v3")
    for mu in range(4):
        for ks in range(12):
            vm.wait(("h", mu, ks))
            r = HR + 48*(mu & 1) + 4*ks
            for de in range(5):
                d = GA + 20*mu + 4*de
                c = "0" if ks == 0 else f"a[{d}:{d+3}]"
                k(f"v_mfma_f32_16x16x32_bf16 a[{d}:{d+3}], {w2reg(5*ks + de)}, a[{r}:{r+3}], {c}")
                if de == 1 and mu >= 1 and ks == 0: pw_addr(mu - 1)
                if de == 2 and mu >= 1 and 2 <= ks < 7:
                    dd = GA + 20*(mu - 1) + 4*(ks - 2)
                    k(f"ds_write_b128 v{vPW}, a[{dd}:{dd+3}] offset:{1024*(ks - 2)}")
            if mu < 2: hload(mu + 2, ks)
    pw_addr(3)
    for de in range(5):
        dd = GA + 60 + 4*de
        k(f"ds_write_b128 v{vPW}, a[{dd}:{dd+3}] offset:{1024*de}")
    stamp(k, 8, stamps)
    OWN, PR = 64, 84
    ls = [k.label("own") for _ in range(5)]
    for mu in range(4):
        k.put(ls[mu])
        if mu < 3: k(f"s_cmp_lg_u32 s{sW}, {mu}\ns_cbranch_scc1 {ls[mu+1]}")
        for x in range(20): k(f"v_accvgpr_read_b32 v{OWN+x}, a{GA+20*mu+x}")
        if mu < 3: k(f"s_branch {ls[4]}")
    k.put(ls[4])
    k(f"s_mul_i32 s34, s{sW}, 20480\nv_add_u32 v{vPW}, s34, v3")
    vm.wait("rs2", "s1c")
    k("s_waitcnt lgkmcnt(0)\ns_barrier")
    for sl in range(3):
        for de in range(5):
            r = PR + 20*sl + 4*de
            k(f"ds_read_b128 v[{r}:{r+3}], v{vPW} offset:{5120*sl + 1024*de}")
    TU = 144
    for x in range(10): k(f"v_lshlrev_b32 v{TU+2*x}, 16, v{RS2+x}\nv_and_b32 v{TU+2*x+1}, 0xffff0000, v{RS2+x}")
    for x in range(10): k(f"v_pk_add_f32 v[{OWN+2*x}:{OWN+2*x+1}], v[{OWN+2*x}:{OWN+2*x+1}], v[{TU+2*x}:{TU+2*x+1}]")
    for sl in range(3):
        for de in range(5):
            k(f"s_waitcnt lgkmcnt({14 - 5*sl - de})")
            for x in range(2):
                o, r = OWN + 4*de + 2*x, PR + 20*sl + 4*de + 2*x
                k(f"v_pk_add_f32 v[{o}:{o+1}], v[{o}:{o+1}], v[{r}:{r+1}]")
    for x in range(10): k(f"v_cvt_pk_bf16_f32 v{RS2+x}, v{OWN+2*x}, v{OWN+2*x+1}")
    for de in range(5): vm.op(f"buffer_store_dwordx2 v[{RS2+2*de}:{RS2+2*de+1}], v{vOS}, {OS}, s31 offen offset:{32*de}", "ost")
    stamp(k, 9, stamps)
    fin = k.label("fin")
    k(f"s_cmp_eq_u32 s{sMODE}, 1\ns_cbranch_scc1 {fin}")
    def redg(a, t):
        k(f"v_mov_b32 v{t}, v{a}\nv_permlane16_swap_b32 v{t}, v{a}\nv_add_f32 v{a}, v{a}, v{t}\nv_mov_b32 v{t}, v{a}\nv_permlane32_swap_b32 v{t}, v{a}\nv_add_f32 v{a}, v{a}, v{t}")
    SA = 30
    k(f"v_pk_add_f32 v[{SA}:{SA+1}], v[{OWN}:{OWN+1}], v[{OWN+2}:{OWN+3}]")
    for x in range(2, 10): k(f"v_pk_add_f32 v[{SA}:{SA+1}], v[{SA}:{SA+1}], v[{OWN+2*x}:{OWN+2*x+1}]")
    k(f"v_add_f32 v{SA}, v{SA}, v{SA+1}")
    redg(SA, SA + 1)
    k(f"v_mul_f32 v{SA+2}, 0x3c4ccccd, v{SA}")
    for x in range(10): k(f"v_pk_add_f32 v[{TU+2*x}:{TU+2*x+1}], v[{OWN+2*x}:{OWN+2*x+1}], v[{SA+2}:{SA+3}] op_sel_hi:[1,0] neg_lo:[0,1] neg_hi:[0,1]")
    k(f"v_pk_mul_f32 v[{SA+4}:{SA+5}], v[{TU}:{TU+1}], v[{TU}:{TU+1}]")
    for x in range(1, 10): k(f"v_pk_fma_f32 v[{SA+4}:{SA+5}], v[{TU+2*x}:{TU+2*x+1}], v[{TU+2*x}:{TU+2*x+1}], v[{SA+4}:{SA+5}]")
    k(f"v_add_f32 v{SA+4}, v{SA+4}, v{SA+5}")
    redg(SA + 4, SA + 5)
    k(f"""v_mov_b32 v{SA+1}, v{SA+4}
    v_lshlrev_b32 v7, 3, v7
    s_lshl_b32 s34, s{sCL}, 12
    s_lshl_b32 s35, s{sW}, 7
    s_add_u32 s34, s34, s35
    s_add_u32 s34, s34, {ST}
    s_lshl_b32 s35, s{sJ}, 9
    s_add_u32 s35, s35, s34
    s_mov_b64 exec, 0xffff
    buffer_store_dwordx2 v[{SA}:{SA+1}], v7, {WS}, s35 offen sc1
    s_mov_b64 exec, -1
    v_lshrrev_b32 v{SA+2}, 4, v0
    v_lshl_add_u32 v7, v{SA+2}, 10, v7""")
    body, body4 = s1_stage(k, vm, LX, sW, S1C, [0, 1], True, U1, 170)
    k(f"""v_and_b32 v{SA+3}, 15, v0
    v_mul_u32_u24 v{SA+3}, 160, v{SA+3}
    v_lshl_add_u32 v{SA+3}, v{SA+2}, 3, v{SA+3}
    s_mul_i32 s35, s{sW}, 2560
    s_add_u32 s35, s35, {LX}
    v_add_u32 v{SA+3}, s35, v{SA+3}
    s_mov_b32 s57, 0""")
    lp, ok = k.label("sp"), k.label("sok")
    P = 36
    k.put(lp)
    k(f"""buffer_load_dwordx2 v[{P}:{P+1}], v7, {WS}, s34 offen sc1
    buffer_load_dwordx2 v[{P+2}:{P+3}], v7, {WS}, s34 offen offset:512 sc1
    s_add_u32 s57, s57, 1
    s_cmp_gt_u32 s57, 0x80000
    s_cbranch_scc1 {ok}
    s_waitcnt vmcnt(0)
    v_and_b32 v{P+4}, v{P}, v{P+1}
    v_and_b32 v{P+5}, v{P+2}, v{P+3}
    v_max_u32 v{P+4}, v{P+4}, v{P+5}
    v_cmp_eq_u32 vcc, -1, v{P+4}
    s_cbranch_vccnz {lp}""")
    k.put(ok)
    vm.drain()
    stamp(k, 10, stamps)
    k(f"v_add_f32 v{SA}, v{P}, v{P+2}")
    redg(SA, SA + 1)
    k(f"""v_mul_f32 v{SA}, 0x3acccccd, v{SA}
    v_fma_f32 v{P}, v{P}, s45, -v{SA}
    v_fma_f32 v{P+2}, v{P+2}, s45, -v{SA}
    v_mul_f32 v{P}, v{P}, v{P}
    v_fmac_f32 v{P}, v{P+2}, v{P+2}
    v_add_f32 v{P+1}, v{P+1}, v{P+3}
    v_fmac_f32 v{P+1}, 0x42a00000, v{P}""".replace("v_mul_f32 v30, 0x3acccccd, v30", "s_mov_b32 s45, 0x3c4ccccd\n    v_mul_f32 v30, 0x3acccccd, v30"))
    redg(P + 1, P)
    k(f"""v_mov_b32 v{SA+1}, 0x3727c5ac
    v_fmac_f32 v{SA+1}, 0x3acccccd, v{P+1}
    v_rsq_f32 v{SA+1}, v{SA+1}
    s_nop 0
    v_mul_f32 v{SA}, v{SA}, v{SA+1}""")
    for x in range(10):
        o = OWN + 2*x
        k(f"v_pk_fma_f32 v[{o}:{o+1}], v[{o}:{o+1}], v[{SA}:{SA+1}], v[{SA}:{SA+1}] op_sel:[0,1,0] op_sel_hi:[1,1,0] neg_lo:[0,0,1] neg_hi:[0,0,1]")
    for x in range(10): k(f"v_cvt_pk_f16_f32 v{TU+x}, v{OWN+2*x}, v{OWN+2*x+1}")
    for de in range(5): k(f"ds_write_b64 v{SA+3}, v[{TU+2*de}:{TU+2*de+1}] offset:{32*de}")
    k("s_waitcnt lgkmcnt(0)\ns_barrier")
    body(); body4()
    stamp(k, 11, stamps)
    k.put(fin)
    if stamps:
        k(f"s_mul_i32 s56, s{sMODE}, 0x40000")
        k("s_waitcnt lgkmcnt(0)")
        k(f"s_lshl_b32 s58, s2, 4\ns_add_u32 s58, s58, s{sW}\ns_lshl_b32 s58, s58, 6\ns_add_u32 s58, s58, {STAMP + 0x40000}\ns_add_u32 s58, s58, s56\nv_mov_b32 v1, 0")
        for i in range(12): k(f"v_mov_b32 v2, s{60+2*i}\nbuffer_store_dword v2, v1, {WS}, s58 offen offset:{4*i}")
    k.put(done); k("s_endpgm")
    return k, kc

if __name__ == "__main__":
    path = sys.argv[1]; opts = sys.argv[2].split(",") if len(sys.argv) > 2 else []
    st = "stamp" in opts
    stop = "p2" if "p2" in opts else "g1" if "g1" in opts else None
    kb, kc = gen_kb(st, stop)
    L = [gen_ka(st), kb] + ([kc] if "nokc" not in opts and not stop else [])
    finish(L, path)
```

```python
import sys
from asmlib import *
import asmlib, hazard, tables
S, D, F = 2048, 640, 1536
U0, XN, X1, X2, H, W1F, W2F, ST, FL, STAMP, U1 = 0, 0x280000, 0x500000, 0x780000, 0xA00000, 0x1000000, 0x11E0000, 0x13C0000, 0x13E0000, 0x1400000, 0x1500000
TOFF, TBLOB = tables.blob()
T_S1, T_HA, T_HB, T_TW = TOFF
OOB = 0x20000000
WS, XS, OS, TS = "s[4:7]", "s[8:11]", "s[12:15]", "s[16:19]"
sW, sJ, sCL, sSIG = 20, 21, 22, 23

class VM:
    def __init__(self, k): self.k, self.q = k, []
    def op(self, s, tag=None): self.k(s); self.q.append(tag); assert len(self.q) <= 63 or True
    def wait(self, *tags):
        ii = [i for i, t in enumerate(self.q) if t in tags]
        if not ii: return
        idx = max(ii)
        n = len(self.q) - 1 - idx
        assert n <= 63
        self.k(f"s_waitcnt vmcnt({n})"); self.q = self.q[idx + 1:]
    def drain(self): self.k("s_waitcnt vmcnt(0)"); self.q = []

def ids(k, done):
    k(f"s_cmp_ge_u32 s2, 256\ns_cbranch_scc1 {done}")
def ids2(k):
    k(f"""s_lshr_b32 s3, s2, 3
    s_and_b32 s{sJ}, s3, 7
    s_lshr_b32 s3, s2, 6
    s_and_b32 s24, s2, 7
    s_lshl_b32 s{sCL}, s24, 2
    s_add_u32 s{sCL}, s{sCL}, s3
    s_lshr_b32 s25, s{sCL}, 1
    s_sub_u32 s26, 32, s25
    s_cmp_eq_u32 s25, 0
    s_cselect_b32 s26, 16, s26
    s_bitcmp1_b32 s3, 0
    s_cselect_b32 s{sSIG}, s26, s25
    v_lshrrev_b32 v1, 6, v0
    v_and_b32 v0, 63, v0
    v_readfirstlane_b32 s{sW}, v1""")
def tblsrd(k, total_from="code_start"):
    l = k.label("pc")
    k("s_getpc_b64 s[16:17]"); k.put(l)
    k(f"s_add_u32 s16, s16, tbl-{l}\ns_addc_u32 s17, s17, 0\ns_mov_b32 s18, {len(TBLOB)}\ns_mov_b32 s19, 0x20000")

def stamp(k, n, on):
    if not on: return
    if not hasattr(k, "stn"): k.stn = []
    i = len(k.stn); k.stn.append(str(n)); assert i < 20
    k(f"s_memrealtime s[{60+2*i}:{61+2*i}]")
def stamp_flush(k, slot, on, sadd=None):
    if not on: return
    k("s_waitcnt lgkmcnt(0)")
    k(f"s_lshl_b32 s58, s2, 3\ns_add_u32 s58, s58, s{sW}\ns_lshl_b32 s58, s58, 7\ns_add_u32 s58, s58, {STAMP + slot*0x40000}\nv_mov_b32 v1, 0")
    if sadd: k(f"s_mul_i32 s56, s{sadd}, 0x40000\ns_add_u32 s58, s58, s56")
    for i in range(len(k.stn)):
        k(f"v_mov_b32 v2, s{60+2*i}\nbuffer_store_dword v2, v1, {WS}, s58 offen offset:{4*i}")
    k("; STAMPNAMES " + k.name + " " + " ".join(k.stn))

def s1_stage(k, vm, xl, nt_s, cst, tiles_pairs, with4, ubase, vt, gq_s=None):
    a0, a4, vo, vo4, op, acc = vt, vt + 1, vt + 2, vt + 3, vt + 4, vt + 20
    k(f"""v_lshrrev_b32 v{a0}, 2, v0
    v_mul_u32_u24 v{a0}, 160, v{a0}
    v_and_b32 v{a4}, 1, v0
    v_lshl_add_u32 v{a4}, v{a4}, 3, v{a0}
    v_bfe_u32 v{vo}, v0, 1, 1
    v_mul_u32_u24 v{vo}, 80, v{vo}
    v_add3_u32 v{a4}, v{a4}, v{vo}, 64
    v_and_b32 v{vo}, 3, v0
    v_lshl_add_u32 v{a0}, v{vo}, 3, v{a0}
    v_bfe_u32 v{vo}, v0, 1, 3
    v_mul_u32_u24 v{vo}, 81920, v{vo}
    v_and_b32 v{vo4}, 1, v0
    v_lshl_add_u32 v{vo}, v{vo4}, 7, v{vo}
    v_bfe_u32 v{op}, v0, 4, 1
    v_lshl_add_u32 v{vo4}, v{op}, 13, v{vo}
    v_lshrrev_b32 v{op}, 5, v0
    v_lshl_add_u32 v{vo4}, v{op}, 3, v{vo4}
    v_lshrrev_b32 v{op}, 4, v0
    v_lshl_add_u32 v{vo}, v{op}, 13, v{vo}
    s_mul_i32 s30, s{nt_s}, 655360
    s_lshl_b32 s31, s{sSIG}, 8
    s_add_u32 s30, s30, s31
    s_lshl_b32 s31, s{sJ}, 4
    s_add_u32 s30, s30, s31
    s_add_u32 s30, s30, {ubase}
    s_add_u32 s32, s30, 65536""")
    if xl >= 49152:
        k(f"v_add_u32 v{a0}, {xl}, v{a0}\nv_add_u32 v{a4}, {xl}, v{a4}"); xl = 0
    if gq_s is not None:
        k(f"s_lshl_b32 s31, s{gq_s}, 5\nv_add_u32 v{a0}, s31, v{a0}\ns_lshl_b32 s31, s{gq_s}, 15\ns_add_u32 s30, s30, s31")
    def body():
        for gq in tiles_pairs:
            for bit in range(2):
                for ka in range(2):
                    for h in range(2):
                        r = op + 8*bit + 4*ka + 2*h
                        k(f"ds_read_b64_tr_b16 v[{r}:{r+1}], v{a0} offset:{xl + (32*ka + 16*h)*160 + 80*bit + 32*gq}")
            for bit in range(2):
                for ka in range(2):
                    r = op + 8*bit + 4*ka
                    k(f"s_waitcnt lgkmcnt({6 - 4*bit - 2*ka})")
                    c = "0" if ka == 0 else f"v[{acc+4*bit}:{acc+4*bit+3}]"
                    k(f"v_mfma_f32_16x16x32_f16 v[{acc+4*bit}:{acc+4*bit+3}], v[{r}:{r+3}], v[{cst+4*ka}:{cst+4*ka+3}], {c}")
            for x in range(4):
                k(f"v_cvt_pk_f16_f32 v{acc+8+x}, v{acc+2*x}, v{acc+2*x+1}")
            if gq: k(f"s_add_u32 s33, s30, {gq*32768}")
            vm.op(f"buffer_store_dwordx4 v[{acc+8}:{acc+11}], v{vo}, {WS}, s{33 if gq else 30} offen")
    def body4():
        for ka in range(2):
            for h in range(2):
                r = op + 4*ka + 2*h
                k(f"ds_read_b64_tr_b16 v[{r}:{r+1}], v{a4} offset:{xl + (32*ka + 16*h)*160}")
        for ka in range(2):
            k(f"s_waitcnt lgkmcnt({2 - 2*ka})")
            c = "0" if ka == 0 else f"v[{acc}:{acc+3}]"
            k(f"v_mfma_f32_16x16x32_f16 v[{acc}:{acc+3}], v[{op+4*ka}:{op+4*ka+3}], v[{cst+4*ka}:{cst+4*ka+3}], {c}")
        k(f"v_cvt_pk_f16_f32 v{acc+12}, v{acc}, v{acc+1}\nv_cvt_pk_f16_f32 v{acc+13}, v{acc+2}, v{acc+3}")
        vm.op(f"buffer_store_dwordx2 v[{acc+12}:{acc+13}], v{vo4}, {WS}, s32 offen")
    return body, body4

def dbgstamp(k, idx_base):
    e = k.label('dbg')
    k(f'''s_cmp_ge_u32 s2, 8
    s_cbranch_scc1 {e}
    s_load_dwordx2 s[52:53], s[0:1], 72
    s_waitcnt vmcnt(0)
    s_memrealtime s[54:55]
    s_waitcnt lgkmcnt(0)
    s_sub_u32 s54, s54, s60
    s_mov_b32 s56, s52
    s_mov_b32 s57, s53
    s_mov_b32 s58, 256
    s_mov_b32 s59, 0x20000
    s_lshl_b32 s55, s2, 2
    v_mov_b32 v1, 0
    v_mov_b32 v2, s54
    buffer_store_dword v2, v1, s[56:59], s55 offen offset:{4*idx_base}''')
    k.put(e)
def gen_ka(stamps=False, dbg=False):
    k = K("ka_kernel", 256, 640, lds=10240 + 2*12288, vgpr=104)
    done = k.label("done"); prep = k.label("prep")
    ids(k, done)
    k("s_load_dwordx2 s[8:9], s[0:1], 0\ns_load_dwordx4 s[36:39], s[0:1], 48\ns_load_dwordx2 s[4:5], s[0:1], 80")
    stamp(k, 0, stamps)
    if dbg: k("s_memrealtime s[60:61]")
    tblsrd(k); ids2(k)
    k(f"s_mov_b32 s10, {S*D*2}\ns_mov_b32 s11, 0x20000\ns_mov_b32 s6, 0x10000000\ns_mov_b32 s7, 0x20000")
    k(f"s_cmp_ge_u32 s{sW}, 8\ns_cbranch_scc1 {prep}")
    vm = VM(k)
    k(f"""v_lshrrev_b32 v2, 4, v0
    v_mul_u32_u24 v2, 81920, v2
    v_and_b32 v3, 15, v0
    v_lshl_add_u32 v2, v3, 4, v2
    v_lshlrev_b32 v4, 4, v0
    s_lshr_b32 s27, s{sW}, 2
    s_and_b32 s28, s{sW}, 3
    s_lshl_b32 s24, s27, 5
    s_lshl_b32 s25, s28, 9
    s_add_u32 s24, s24, s25
    s_add_u32 s24, s24, s{sSIG}
    s_mul_i32 s24, s24, 1280
    s_add_u32 s25, s24, {256*1280}
    s_mul_i32 s26, s{sJ}, 160
    s_add_u32 s34, s24, s26
    s_add_u32 s35, s25, s26
    s_lshl_b32 s29, s28, 11
    s_waitcnt lgkmcnt(0)""")
    X = [8, 28]; SL = [48, 52]; CST = 56
    for hh in range(2):
        for n in range(5):
            vm.op(f"buffer_load_dwordx4 v[{X[hh]+4*n}:{X[hh]+4*n+3}], v2, {XS}, s{24+hh} offen offset:{256*n}", ("x", hh, n))
    for hh in range(2):
        vm.op(f"buffer_load_dwordx4 v[{SL[hh]}:{SL[hh]+3}], v2, {XS}, s{34+hh} offen", "sl")
    for ka in range(2):
        vm.op(f"buffer_load_dwordx4 v[{CST+4*ka}:{CST+4*ka+3}], v4, {TS}, s29 offen offset:{T_S1 + 1024*ka}", "cst")
    body, body4 = s1_stage(k, vm, 0, 28, CST, [0], 'dyn', U0, 64, gq_s=27)
    k(f"""s_mul_i32 s26, s{sW}, 1280
    v_lshrrev_b32 v5, 4, v0
    v_mul_u32_u24 v5, 160, v5
    v_lshl_add_u32 v5, v3, 4, v5
    v_add_u32 v5, s26, v5
    v_mov_b32 v6, 0x3f803f80""")
    A = 84
    for r in range(4): k(f"v_mov_b32 v{A+r}, 0")
    for hh in range(2):
        for n in range(5):
            vm.wait(("x", hh, n))
            for d in range(4):
                r = X[hh] + 4*n + d
                k(f"v_dot2c_f32_bf16 v{A+2*hh}, v{r}, v6\nv_dot2c_f32_bf16 v{A+2*hh+1}, v{r}, v{r}")
    stamp(k, 1, stamps)
    for m in ("quad_perm:[1,0,3,2]", "quad_perm:[2,3,0,1]", "row_half_mirror", "row_mirror"):
        for r in range(4): k(f"v_add_f32_dpp v{A+r}, v{A+r}, v{A+r} {m} row_mask:0xf bank_mask:0xf")
    for hh in range(2):
        m, q = A + 2*hh, A + 2*hh + 1
        k(f"""v_mul_f32 v{m}, 0x3acccccd, v{m}
        v_mul_f32 v{q}, 0x3acccccd, v{q}
        v_fma_f32 v{q}, -v{m}, v{m}, v{q}
        v_max_f32 v{q}, 0, v{q}
        v_add_f32 v{q}, 0x3727c5ac, v{q}
        v_rsq_f32 v{q}, v{q}""")
    for hh in range(2):
        m, q = A + 2*hh, A + 2*hh + 1
        k(f"v_mul_f32 v{m}, v{m}, v{q}")
    vm.wait("sl")
    for hh in range(2):
        m, q = A + 2*hh, A + 2*hh + 1
        t = 8 + 8*hh
        for d in range(4):
            k(f"v_lshlrev_b32 v{t+2*d}, 16, v{SL[hh]+d}\nv_and_b32 v{t+2*d+1}, 0xffff0000, v{SL[hh]+d}")
        for d in range(4):
            k(f"v_pk_fma_f32 v[{t+2*d}:{t+2*d+1}], v[{t+2*d}:{t+2*d+1}], v[{m}:{q}], v[{m}:{q}] op_sel:[0,1,0] op_sel_hi:[1,1,0] neg_lo:[0,0,1] neg_hi:[0,0,1]")
        for d in range(4):
            k(f"v_cvt_pk_f16_f32 v{SL[hh]+d}, v{t+2*d}, v{t+2*d+1}")
    k("v_cmp_gt_u32 vcc, 10, v3\ns_and_saveexec_b64 s[40:41], vcc")
    for hh in range(2): k(f"ds_write_b128 v5, v[{SL[hh]}:{SL[hh]+3}] offset:{640*hh}")
    k("s_mov_b64 exec, s[40:41]")
    vm.wait("cst")
    k("s_waitcnt lgkmcnt(0)\ns_barrier")
    stamp(k, 2, stamps)
    body()
    sk = k.label("sk"); k(f"s_cmp_eq_u32 s27, 0\ns_cbranch_scc1 {sk}")
    body4(); k.put(sk)
    stamp(k, 3, stamps); stamp_flush(k, 0, stamps)
    if dbg:
        e2 = k.label("nd"); k(f"s_cmp_lg_u32 s{sW}, 0\ns_cbranch_scc1 {e2}"); dbgstamp(k, 0); k.put(e2)
    k("s_endpgm")
    k.put(prep)
    w2p, nou, fin = k.label("w2p"), k.label("nou"), k.label("fin")
    k(f"""s_sub_u32 s27, s{sW}, 8
    s_lshl_b32 s24, s27, 8
    s_add_u32 s24, s24, s2
    s_mul_i32 s40, s27, 12288
    s_add_u32 s40, s40, 10240
    v_lshrrev_b32 v2, 3, v0
    v_bfe_u32 v3, v0, 4, 2
    v_lshlrev_b32 v3, 1, v3
    v_and_b32 v4, 7, v0
    v_xor_b32 v3, v3, v4
    v_lshlrev_b32 v3, 4, v3
    v_lshlrev_b32 v9, 4, v0
    v_and_b32 v10, 3, v0
    v_lshlrev_b32 v10, 3, v10
    v_add_u32 v10, s40, v10""")
    l = k.label("pc2")
    k("s_getpc_b64 s[44:45]"); k.put(l)
    k(f"""s_sub_u32 s44, s44, {l}-code_start
    s_subb_u32 s45, s45, 0
    s_mov_b32 s46, code_end-code_start
    s_mov_b32 s47, 0x20000
    s_lshr_b32 s25, s2, 3
    s_lshl_b32 s26, s27, 5
    s_add_u32 s25, s25, s26
    s_lshl_b32 s25, s25, 10
    buffer_load_dwordx4 v[60:63], v9, s[44:47], s25 offen
    s_waitcnt lgkmcnt(0)
    s_mov_b32 s48, s38
    s_mov_b32 s49, s39
    s_mov_b32 s38, {D*F*2}
    s_mov_b32 s39, 0x20000
    s_mov_b32 s50, {D*F*2}
    s_mov_b32 s51, 0x20000
    s_cmp_ge_u32 s24, 400
    s_cbranch_scc1 {nou}
    s_cmp_ge_u32 s24, 240
    s_cbranch_scc1 {w2p}""")
    def init_words():
        z = k.label("z"); e = k.label("e")
        k(f"""s_lshl_b32 s28, s{sCL}, 3
        s_add_u32 s28, s28, s{sJ}
        s_cmp_eq_u32 s27, 0
        s_cbranch_scc0 {z}
        s_lshl_b32 s28, s28, 9
        s_add_u32 s28, s28, {ST}
        v_mov_b32 v12, -1
        v_mov_b32 v13, -1
        v_lshlrev_b32 v11, 3, v0
        buffer_store_dwordx2 v[12:13], v11, {WS}, s28 offen
        s_branch {e}""")
        k.put(z)
        k(f"""s_lshl_b32 s28, s{sCL}, 7
        s_lshl_b32 s29, s{sJ}, 4
        s_add_u32 s28, s28, s29
        s_add_u32 s28, s28, {FL}
        v_mov_b32 v12, 0
        v_lshrrev_b32 v11, 2, v0
        v_lshlrev_b32 v11, 12, v11
        v_and_b32 v13, 3, v0
        v_lshl_add_u32 v11, v13, 2, v11
        s_mov_b64 exec, 0xffff
        buffer_store_dword v12, v11, {WS}, s28 offen
        s_mov_b64 exec, -1""")
        k.put(e)
    k(f"""s_mul_i32 s25, s24, 2731
    s_lshr_b32 s25, s25, 16
    s_mul_i32 s26, s25, 24
    s_sub_u32 s26, s24, s26
    s_mul_i32 s28, s25, {64*3072}
    s_lshl_b32 s29, s26, 7
    s_add_u32 s28, s28, s29
    v_mul_u32_u24 v2, 3072, v2
    v_add_u32 v2, v2, v3
    s_mov_b32 m0, s40""")
    for i in range(8):
        k(f"buffer_load_dwordx4 v2, s[36:39], s28 offen lds")
        if i < 7: k(f"s_add_u32 s28, s28, {8*3072}\ns_add_u32 m0, m0, 1024")
    init_words()
    k("s_barrier")
    k(f"""v_bfe_u32 v5, v0, 2, 2
    v_lshrrev_b32 v6, 4, v0
    v_lshl_add_u32 v6, v6, 3, v5
    v_lshl_add_u32 v10, v6, 7, v10
    v_lshrrev_b32 v5, 1, v5
    v_lshl_add_u32 v10, v5, 5, v10
    v_xor_b32 v11, 32, v10
    v_xor_b32 v12, 64, v10
    v_xor_b32 v13, 96, v10
    s_lshl_b32 s26, s26, 2
    s_mul_i32 s25, s25, 6
    s_waitcnt vmcnt(0)""")
    for ph in range(4):
        for ka in range(2):
            for h in range(2):
                r = 16 + 8*ph + 4*ka + 2*h
                k(f"ds_read_b64_tr_b16 v[{r}:{r+1}], v{10 + (ph ^ (2*h))} offset:{512*h + 4096*ka}")
    for ph in range(4):
        k(f"""s_add_u32 s28, s26, {ph}
        s_mul_i32 s29, s28, 21846
        s_lshr_b32 s29, s29, 16
        s_mul_i32 s30, s29, 57
        s_add_u32 s28, s28, s30
        s_add_u32 s28, s28, s25
        s_lshl_b32 s28, s28, 10
        s_add_u32 s28, s28, {W1F}
        s_waitcnt lgkmcnt({12 - 4*ph})""")
        for ka in range(2):
            r = 16 + 8*ph + 4*ka
            k(f"buffer_store_dwordx4 v[{r}:{r+3}], v9, {WS}, s28 offen offset:{3072*ka}")
    if dbg:
        e2 = k.label("nd"); k(f"s_cmp_lg_u32 s{sW}, 8\ns_cbranch_scc1 {e2}"); dbgstamp(k, 8); k.put(e2)
    k("s_endpgm")
    k.put(w2p)
    k(f"""s_sub_u32 s24, s24, 240
    s_mul_i32 s25, s24, 6554
    s_lshr_b32 s25, s25, 16
    s_mul_i32 s26, s25, 10
    s_sub_u32 s26, s24, s26
    s_mul_i32 s28, s25, {96*1280}
    s_lshl_b32 s29, s26, 7
    s_add_u32 s28, s28, s29
    v_mul_u32_u24 v2, 1280, v2
    v_add_u32 v2, v2, v3
    s_mov_b32 m0, s40""")
    for i in range(12):
        k(f"buffer_load_dwordx4 v2, s[48:51], s28 offen lds")
        if i < 11: k(f"s_add_u32 s28, s28, {8*1280}\ns_add_u32 m0, m0, 1024")
    init_words()
    k("s_barrier")
    k(f"""v_lshrrev_b32 v6, 2, v0
    v_lshl_add_u32 v10, v6, 7, v10
    v_bfe_u32 v5, v0, 3, 2
    v_lshl_add_u32 v10, v5, 5, v10
    v_xor_b32 v11, 32, v10
    v_xor_b32 v12, 64, v10
    v_xor_b32 v13, 96, v10
    s_lshl_b32 s26, s26, 2
    s_lshr_b32 s30, s25, 1
    s_mul_i32 s30, s30, 30
    s_and_b32 s31, s25, 1
    s_mul_i32 s32, s31, 10
    s_add_u32 s32, s32, s30
    s_mul_i32 s33, s31, 5
    s_add_u32 s33, s33, s30
    s_add_u32 s33, s33, 20
    s_waitcnt vmcnt(0)""")
    RR = [(0, 16), (48, 64), (32, 80)]
    for ph in range(4):
        for st in range(3):
            for h in range(2):
                r = 16 + 12*ph + 4*st + 2*h
                k(f"ds_read_b64_tr_b16 v[{r}:{r+1}], v{10 + ph} offset:{RR[st][h]*128}")
        k(f"""s_add_u32 s28, s26, {ph}
        s_mul_i32 s29, s28, 13108
        s_lshr_b32 s29, s29, 16
        s_mul_i32 s29, s29, 235
        s_add_u32 s28, s28, s29
        s_add_u32 s29, s28, s33
        s_add_u32 s28, s28, s32
        s_lshl_b32 s28, s28, 10
        s_lshl_b32 s29, s29, 10
        s_add_u32 s28, s28, {W2F}
        s_add_u32 s29, s29, {W2F}
        s_add_u32 s34, s28, 5120
        s_waitcnt lgkmcnt(0)""")
        for st, sr in enumerate((28, 34, 29)):
            r = 16 + 12*ph + 4*st
            k(f"buffer_store_dwordx4 v[{r}:{r+3}], v9, {WS}, s{sr} offen")
    k("s_endpgm")
    k.put(nou)
    init_words()
    k("s_barrier")
    k.put(done); k("s_endpgm")
    return k

def finish(L, path):
    seen = []
    for k in L:
        if k not in seen:
            seen.append(k); k.lines = hazard.fix(k.lines)
    o = build(L, path)
    o = o.replace(".text\n", ".text\n.p2align 8\ncode_start:\n", 1)
    o = o.replace('.section .rodata,"a"\n', ".p2align 8\n.type tbl,@object\ntbl:\n" + tables.emit(TBLOB) + "code_end:\n" + '.section .rodata,"a"\n', 1)
    open(path, "w").write(o)

if __name__ == "__main__":
    finish([gen_ka()], sys.argv[1])
```

```python
from fnet import *
LV, LHB, LX = 98304, 118912, 81920
sMODE = 59
def poll(k, addr_s, nl, target, vt):
    lp, ok = k.label("poll"), k.label("ok")
    k(f"s_mov_b32 s57, 0")
    k.put(lp)
    k(f"""buffer_load_dword v{vt+1}, v{vt}, {WS}, s{addr_s} offen sc1
    s_add_u32 s57, s57, 1
    s_cmp_gt_u32 s57, 0x80000
    s_cbranch_scc1 {ok}
    s_waitcnt vmcnt(0)
    v_cmp_gt_u32 vcc, {target}, v{vt+1}
    s_cbranch_vccnz {lp}""")
    k.put(ok)
    k("s_waitcnt vmcnt(0)")
def sync(k, vm, kind, vt, between=None):
    vm.drain(); k("s_barrier")
    sk = k.label("nf")
    if between: between()
    k(f"""s_cmp_lg_u32 s{sW}, 0
    s_cbranch_scc1 {sk}
    s_lshl_b32 s24, s{sMODE}, 13
    s_lshl_b32 s25, s{sCL}, 7
    s_add_u32 s24, s24, s25
    s_add_u32 s24, s24, {FL + 4096*kind}
    s_lshl_b32 s25, s{sJ}, 4
    s_add_u32 s25, s25, s24
    v_mov_b32 v{vt}, 0
    v_mov_b32 v{vt+1}, 1
    s_mov_b64 exec, 1
    buffer_store_dword v{vt+1}, v{vt}, {WS}, s25 offen sc1
    s_mov_b64 exec, -1
    v_and_b32 v{vt}, 7, v0
    v_lshlrev_b32 v{vt}, 4, v{vt}""")
    poll(k, 24, 8, 1, vt)
    k.put(sk)
    k("s_barrier")

OPT = set()
def gen_kb(stamps=False, stop=None):
    SC = '' if 'nosc' in OPT else ' sc1'
    k = K("kb_kernel", 256, 256, lds=160*1024, vgpr=256, agpr=256)
    kc = K("kc_kernel", 256, 256, lds=160*1024, vgpr=256, agpr=256)
    kc(f"s_mov_b32 s{sMODE}, 1\ns_branch kbc_common")
    k(f"s_mov_b32 s{sMODE}, 0"); k.put("kbc_common")
    done = k.label("done")
    ids(k, done)
    k("s_load_dwordx2 s[8:9], s[0:1], 0\ns_load_dwordx2 s[12:13], s[0:1], 64\ns_load_dwordx2 s[4:5], s[0:1], 80")
    stamp(k, 'start', stamps)
    tblsrd(k); ids2(k)
    vm = VM(k)
    k(f"""s_mov_b32 s6, 0x10000000
    s_mov_b32 s7, 0x20000
    s_mov_b32 s11, 0x20000
    s_mov_b32 s15, 0x20000
    s_lshr_b32 s24, s{sJ}, 2
    s_sub_u32 s25, 32, s{sSIG}
    s_and_b32 s25, s25, 31
    s_cmp_eq_u32 s24, 0
    s_cselect_b32 s25, s{sSIG}, s25
    s_mul_i32 s25, s25, 81920
    s_mul_i32 s26, s{sW}, 3
    s_lshl_b32 s27, s{sW}, 1
    s_add_u32 s27, s27, 2
    s_cmp_lt_u32 s{sW}, 2
    s_cselect_b32 s26, s26, s27
    s_lshl_b32 s27, s26, 13
    s_add_u32 s25, s25, s27
    s_mul_i32 s27, s{sMODE}, {U1 - U0}
    s_add_u32 s25, s25, s27
    s_lshl_b32 s28, s26, 9
    s_mul_i32 s29, s{sW}, 24576
    v_lshrrev_b32 v1, 3, v0
    v_lshlrev_b32 v1, 7, v1
    v_bfe_u32 v2, v0, 4, 2
    v_lshlrev_b32 v2, 1, v2
    v_and_b32 v3, 7, v0
    v_xor_b32 v2, v2, v3
    v_lshl_add_u32 v1, v2, 4, v1
    v_lshlrev_b32 v3, 4, v0
    v_bfe_u32 v2, v0, 3, 1
    v_lshlrev_b32 v2, 2, v2
    v_lshrrev_b32 v4, 4, v0
    v_add_u32 v2, v2, v4
    v_lshlrev_b32 v2, 6, v2
    s_mov_b32 m0, s29
    s_waitcnt lgkmcnt(0)""")
    S2C, HAC, TW, RES, HBC, OP, DD, PK, TMP, HD, WO, TT = 16, 24, 32, 80, 92, 128, 160, 176, 184, 186, 202, 210
    def udma(i):
        for x in range(8):
            if x == 4: k("s_add_u32 s25, s25, 4096\ns_add_u32 m0, m0, 4096")
            vm.op(f"buffer_load_dwordx4 v1, {WS}, s25 offen offset:{1024*(x & 3)} lds", ("u", i))
        k("s_add_u32 s25, s25, 4096\ns_add_u32 m0, m0, 4096")
    def twl(i):
        o = T_TW + 512*i
        k(f"s_add_u32 s30, s28, {o}")
        for x in range(4):
            vm.op(f"buffer_load_dwordx4 v[{TW+16*i+4*x}:{TW+16*i+4*x+3}], v2, {TS}, s30 offen offset:{16*x}", ("tw", i))
    udma(0)
    k(f"s_mov_b32 s30, {T_HA}")
    for T in range(2): vm.op(f"buffer_load_dwordx4 v[{HAC+4*T}:{HAC+4*T+3}], v3, {TS}, s30 offen offset:{1024*T}", "ha")
    twl(0); udma(1); twl(1)
    k(f"s_cmp_lt_u32 s{sW}, 2\ns_cselect_b32 s25, s25, {OOB}")
    udma(2); twl(2)
    k(f"s_lshl_b32 s30, s{sW}, 11\ns_add_u32 m0, s30, {LHB}\ns_add_u32 s30, s30, {T_HB}")
    for x in range(2): vm.op(f"buffer_load_dwordx4 v3, {TS}, s30 offen offset:{1024*x} lds", "hb")
    k(f"s_mov_b32 m0, {LHB + 8192}\ns_mov_b32 s30, {T_HB + 8192}")
    vm.op(f"buffer_load_dwordx4 v3, {TS}, s30 offen lds", "hb")
    m0l, m1l = k.label("m0"), k.label("m1")
    k(f"""s_mul_i32 s33, s{sCL}, 81920
    s_lshl_b32 s34, s{sJ}, 2
    s_add_u32 s34, s34, s{sW}
    s_mul_i32 s34, s34, 2560
    s_add_u32 s33, s33, s34
    s_and_b32 s35, s{sJ}, 3
    s_lshl_b32 s35, s35, 9
    s_lshl_b32 s36, s24, 5
    s_add_u32 s35, s35, s36
    s_add_u32 s35, s35, s{sSIG}
    s_cmp_eq_u32 s{sMODE}, 0
    s_cbranch_scc0 {m1l}
    s_lshl_b32 s31, s{sW}, 7
    s_add_u32 s31, s31, s35
    s_mul_i32 s31, s31, 1280
    s_add_u32 s32, s31, 81920
    s_mov_b32 s10, {S*D*2}
    s_mov_b32 s12, s4
    s_mov_b32 s13, s5
    s_mov_b32 s14, 0x10000000
    s_branch {m0l}""")
    k.put(m1l)
    k(f"""s_add_u32 s31, s33, {X2}
    s_add_u32 s32, s31, 1280
    s_mov_b32 s8, s4
    s_mov_b32 s9, s5
    s_mov_b32 s10, 0x10000000
    s_mov_b32 s14, {S*D*2}""")
    k.put(m0l)
    k(f"""v_and_b32 v15, 15, v0
    v_lshlrev_b32 v11, 5, v15
    v_lshl_add_u32 v13, v4, 3, v11
    v_cmp_gt_u32 vcc, 8, v15
    v_mov_b32 v12, {OOB}
    v_lshrrev_b32 v14, 5, v0
    v_lshl_add_u32 v14, v14, 4, v11
    v_mov_b32 v11, v13
    v_cndmask_b32 v12, v12, v11, vcc
    v_bfe_u32 v13, v0, 4, 1
    v_mul_u32_u24 v13, 1280, v13
    v_add_u32 v13, v13, v14
    v_mov_b32 v14, {OOB}
    v_cndmask_b32 v14, v14, v13, vcc
    v_cndmask_b32 v212, 0, 1.0, vcc""")
    for R in range(2):
        for tp in range(3):
            r = RES + 6*R + 2*tp
            vm.op(f"buffer_load_dwordx2 v[{r}:{r+1}], v{12 if tp == 2 else 11}, {XS}, s{31+R} offen offset:{512*tp}", "res")
    k(f"""s_lshl_b32 s37, s{sJ}, 2
    s_add_u32 s37, s37, s{sW}
    s_mul_i32 s37, s37, 61440
    s_add_u32 s38, s37, {W2F}
    s_add_u32 s37, s37, {W1F}""")
    w1n = [0]
    def w1load(n):
        for _ in range(n):
            f = w1n[0]; w1n[0] += 1
            vm.op(f"buffer_load_dwordx4 a[{4*f}:{4*f+3}], v3, {WS}, s37 offen offset:{1024*(f & 3)}", "w1")
            if f & 3 == 3: k("s_add_u32 s37, s37, 4096")
    w1load(16)
    k(f"""v_and_b32 v5, 7, v0
    v_lshl_add_u32 v5, v5, 6, s35
    v_cvt_f32_u32 v5, v5
    v_mul_f32 v5, 0x3a000000, v5
    v_lshlrev_b32 v6, 1, v4
    v_cvt_f32_u32 v6, v6
    v_bfe_u32 v7, v0, 3, 1
    v_cvt_f32_u32 v7, v7
    v_mul_f32 v7, 0x3e800000, v7
    v_fmac_f32 v7, v5, v6
    s_cmp_eq_u32 s{sSIG}, 0
    s_cselect_b32 s39, 1, 0
    s_and_b32 s40, s39, s24
    s_cmp_eq_u32 s24, 0
    s_cselect_b32 s42, 0x3e000000, 0xbe000000
    s_cmp_eq_u32 s39, 1
    s_cselect_b32 s42, 0, s42
    s_cmp_eq_u32 s40, 1
    s_cselect_b32 s41, 0, 0x3e000000
    s_cselect_b32 s42, 0x3e000000, s42
    s_cselect_b32 s43, 0, 0xbe800000""".replace("s_cselect_b32 s42, 0x3e000000, 0xbe000000", "s_mov_b32 s42, 0xbe000000\n    s_cselect_b32 s42, 0x3e000000, s42"))
    import struct
    fl = lambda x: "0x%08x" % struct.unpack("<I", struct.pack("<f", x))[0]
    for ka in range(2):
        for h in range(2):
            for u in range(2):
                c = 16*ka + 8*h + u; t = OP + 4*(4*ka + 2*h + u)
                k(f"v_fmamk_f32 v{t}, v5, {fl(c)}, v7\nv_add_f32 v{t+1}, s43, v{t}\nv_cos_f32 v{t}, v{t}\nv_cos_f32 v{t+1}, v{t+1}")
    for x in range(8):
        t = OP + 4*x
        k(f"v_mul_f32 v{t}, s41, v{t}\nv_mul_f32 v{t+1}, s42, v{t+1}\nv_cvt_pk_f16_f32 v{S2C+x}, v{t}, v{t+1}")
    k(f"""v_lshrrev_b32 v5, 2, v0
    v_lshlrev_b32 v5, 7, v5
    v_and_b32 v6, 3, v0
    v_lshl_add_u32 v5, v6, 3, v5
    v_bfe_u32 v6, v0, 3, 2
    v_lshl_add_u32 v5, v6, 5, v5
    v_add_u32 v5, s29, v5
    v_and_b32 v8, 7, v0
    v_mul_u32_u24 v8, 2576, v8
    v_mul_u32_u24 v9, 320, v4
    v_add_u32 v8, v8, v9
    v_bfe_u32 v9, v0, 3, 1
    v_lshl_add_u32 v8, v9, 3, v8
    s_lshl_b32 s30, s26, 4
    s_add_u32 s30, s30, {LV}
    v_add_u32 v8, s30, v8
    s_mul_i32 s30, s{sW}, 5152
    s_add_u32 s30, s30, {LV}
    v_mul_u32_u24 v9, 160, v15
    v_add_u32 v9, s30, v9
    v_bfe_u32 v10, v0, 4, 1
    v_lshl_add_u32 v10, v10, 4, v9
    v_lshl_add_u32 v9, v4, 4, v9
    v_xor_b32 v6, 64, v5
    v_xor_b32 v7, 96, v5
    v_mov_b32 v4, v5
    v_xor_b32 v5, 32, v5""")
    stamp(k, 'setup', stamps)
    for i in range(3):
        vm.wait(("tw", i), "ha") if i == 0 else vm.wait(("tw", i))
        sk = None
        if i == 2:
            sk = k.label("q2"); k(f"s_cmp_ge_u32 s{sW}, 2\ns_cbranch_scc1 {sk}")
        for t in range(4):
            for ka in range(2):
                for h in range(2):
                    r = OP + 8*t + 4*ka + 2*h
                    k(f"ds_read_b64_tr_b16 v[{r}:{r+1}], v{4+t} offset:{8192*i + 4096*ka + 2048*h}")
        if i < 2: w1load(12)
        for t in range(4):
            for ka in range(2):
                r = OP + 8*t + 4*ka
                k(f"s_waitcnt lgkmcnt({14 - 4*t - 2*ka})")
                c = "0" if ka == 0 else f"v[{DD+4*t}:{DD+4*t+3}]"
                k(f"v_mfma_f32_16x16x32_f16 v[{DD+4*t}:{DD+4*t+3}], v[{r}:{r+3}], v[{S2C+4*ka}:{S2C+4*ka+3}], {c}")
        for hp in range(2):
            for r in range(4):
                k(f"v_cvt_pk_f16_f32 v{PK+2*r+hp}, v{DD+8*hp+r}, v{DD+8*hp+4+r}")
        for p in range(2):
            for hp in range(2): k(f"v_mov_b32 v{TMP+hp}, v{PK+4*p+hp}")
            for hp in range(2): k(f"v_mov_b32_dpp v{PK+4*p+hp}, v{PK+4*p+2+hp} row_ror:8 row_mask:0xf bank_mask:0xc")
            for hp in range(2): k(f"v_mov_b32_dpp v{PK+4*p+2+hp}, v{TMP+hp} row_ror:8 row_mask:0xf bank_mask:0x3")
        for p in range(2):
            for T in range(2):
                d = HD + 8*p + 4*T
                k(f"v_mfma_f32_16x16x32_f16 v[{d}:{d+3}], v[{HAC+4*T}:{HAC+4*T+3}], v[{PK+4*p}:{PK+4*p+3}], 0")
        for p in range(2):
            for T in range(2):
                for u in range(2):
                    d = HD + 8*p + 4*T + 2*u; w = TW + 16*i + 8*p + 4*T + 2*u; t = DD + 2*(4*p + 2*T + u)
                    k(f"v_pk_mul_f32 v[{t}:{t+1}], v[{d}:{d+1}], v[{w}:{w+1}] op_sel_hi:[1,0]")
                    k(f"v_pk_fma_f32 v[{t}:{t+1}], v[{d}:{d+1}], v[{w}:{w+1}], v[{t}:{t+1}] op_sel:[1,1,0] op_sel_hi:[0,1,1] neg_hi:[1,0,0]")
                    k(f"v_cvt_pk_f16_f32 v{WO+2*(2*T+u)+p}, v{t}, v{t+1}")
        for T in range(2):
            for u in range(2):
                r = WO + 2*(2*T + u)
                k(f"ds_write_b64 v8, v[{r}:{r+1}] offset:{(8*T + u)*160 + 16*i}")
        if sk: k.put(sk)
    vm.wait("hb")
    w1load(20)
    stamp(k, 'quads', stamps)
    k("s_waitcnt lgkmcnt(0)\ns_barrier")
    k(f"v_add_u32 v213, {LHB}, v3")
    order = []
    for ks in range(3):
        for R in range(2):
            r = OP + 12*R + 4*ks
            k(f"ds_read_b128 v[{r}:{r+3}], v{10 if ks == 2 else 9} offset:{2576*R + 64*ks}")
        for tp in range(3):
            r = HBC + 4*(3*tp + ks)
            k(f"ds_read_b128 v[{r}:{r+3}], v213 offset:{1024*(3*tp + ks)}")
    for ks in range(3):
        for tp in range(3):
            k(f"s_waitcnt lgkmcnt({12 - 5*ks - tp})")
            for R in range(2):
                d = DD + 12*R + 4*tp; a = OP + 12*R + 4*ks; b = HBC + 4*(3*tp + ks)
                c = "0" if ks == 0 else f"v[{d}:{d+3}]"
                k(f"v_mfma_f32_16x16x32_f16 v[{d}:{d+3}], v[{a}:{a+3}], v[{b}:{b+3}], {c}")
    vm.wait("res")
    TU = 32
    for x in range(12): k(f"v_lshlrev_b32 v{TU+2*x}, 16, v{RES+x}\nv_and_b32 v{TU+2*x+1}, 0xffff0000, v{RES+x}")
    k("s_mov_b32 s44, 0x41000000")
    for x in range(12):
        k(f"v_pk_fma_f32 v[{DD+2*x}:{DD+2*x+1}], v[{DD+2*x}:{DD+2*x+1}], s[44:45], v[{TU+2*x}:{TU+2*x+1}] op_sel_hi:[1,0,1]")
    Q = 56
    def packstore(base, tagname):
        for tp in range(3):
            for R in range(2):
                for x in range(2):
                    s = DD + 12*R + 4*tp + 2*x
                    k(f"v_cvt_pk_bf16_f32 v{Q+4*tp+2*R+x}, v{s}, v{s+1}")
        k(f"s_add_u32 s30, s33, {base}")
        for tp in range(3):
            for x in range(2): k(f"v_permlane16_swap_b32 v{Q+4*tp+x}, v{Q+4*tp+2+x}")
            vm.op(f"buffer_store_dwordx4 v[{Q+4*tp}:{Q+4*tp+3}], v{14 if tp == 2 else 13}, {WS}, s30 offen offset:{512*tp} sc1", tagname)
    def reduce2(a, b, t):
        k(f"""v_permlane32_swap_b32 v{a}, v{b}
        v_add_f32 v{a}, v{a}, v{b}
        v_mov_b32 v{t}, v{a}
        v_permlane16_swap_b32 v{t}, v{a}
        v_add_f32 v{a}, v{a}, v{t}""")
        for m in ("quad_perm:[1,0,3,2]", "quad_perm:[2,3,0,1]", "row_half_mirror", "row_mirror"):
            k(f"v_add_f32_dpp v{a}, v{a}, v{a} {m} row_mask:0xf bank_mask:0xf")
    SA = 70
    for R in range(2):
        k(f"v_pk_add_f32 v[{SA+2*R}:{SA+2*R+1}], v[{DD+12*R}:{DD+12*R+1}], v[{DD+12*R+2}:{DD+12*R+3}]")
    for x in range(2, 6):
        for R in range(2):
            k(f"v_pk_add_f32 v[{SA+2*R}:{SA+2*R+1}], v[{SA+2*R}:{SA+2*R+1}], v[{DD+12*R+2*x}:{DD+12*R+2*x+1}]")
    for R in range(2): k(f"v_add_f32 v{SA+2*R}, v{SA+2*R}, v{SA+2*R+1}")
    reduce2(SA, SA + 2, SA + 1)
    k(f"v_mul_f32 v{SA}, 0x3acccccd, v{SA}")
    packstore(X1, "x1st")
    k(f"v_readlane_b32 s46, v{SA}, 0\nv_readlane_b32 s48, v{SA}, 32")
    for R in range(2):
        for x in range(6):
            d = DD + 12*R + 2*x
            if x < 4: k(f"v_pk_add_f32 v[{d}:{d+1}], v[{d}:{d+1}], s[{46+2*R}:{47+2*R}] op_sel_hi:[1,0] neg_lo:[0,1] neg_hi:[0,1]")
            else: k(f"v_pk_fma_f32 v[{d}:{d+1}], v[212:213], s[{46+2*R}:{47+2*R}], v[{d}:{d+1}] op_sel_hi:[0,0,1] neg_lo:[0,1,0] neg_hi:[0,1,0]")
    for R in range(2):
        k(f"v_pk_mul_f32 v[{SA+2*R}:{SA+2*R+1}], v[{DD+12*R}:{DD+12*R+1}], v[{DD+12*R}:{DD+12*R+1}]")
    for x in range(1, 6):
        for R in range(2):
            d = DD + 12*R + 2*x
            k(f"v_pk_fma_f32 v[{SA+2*R}:{SA+2*R+1}], v[{d}:{d+1}], v[{d}:{d+1}], v[{SA+2*R}:{SA+2*R+1}]")
    for R in range(2): k(f"v_add_f32 v{SA+2*R}, v{SA+2*R}, v{SA+2*R+1}")
    reduce2(SA, SA + 2, SA + 1)
    k(f"v_mov_b32 v{SA+1}, 0x3727c5ac\nv_fmac_f32 v{SA+1}, 0x3acccccd, v{SA}\nv_rsq_f32 v{SA}, v{SA+1}\ns_nop 0")
    k(f"v_readlane_b32 s46, v{SA}, 0\nv_readlane_b32 s48, v{SA}, 32")
    for R in range(2):
        for x in range(6):
            d = DD + 12*R + 2*x
            k(f"v_pk_mul_f32 v[{d}:{d+1}], v[{d}:{d+1}], s[{46+2*R}:{47+2*R}] op_sel_hi:[1,0]")
    Q = 72
    packstore(XN, "xnst")
    stamp(k, 'hb_ln', stamps)
    if stop == "p2":
        stamp_flush(k, 1, stamps); k.put(done); k("s_endpgm"); return k, kc
    vD, vA0, vA1, v8l, RING, ACC, PKO = 1, 4, 5, 2, 8, 24, 48
    W2V = 64
    k(f"""v_lshrrev_b32 v6, 3, v0
    v_and_b32 v7, 7, v0
    v_xor_b32 v7, v7, v6
    v_mul_u32_u24 v{vD}, 1280, v6
    v_lshl_add_u32 v{vD}, v7, 4, v{vD}
    v_lshrrev_b32 v6, 4, v0
    v_and_b32 v7, 7, v0
    v_xor_b32 v6, v6, v7
    v_lshlrev_b32 v6, 4, v6
    v_lshl_add_u32 v6, v7, 7, v6
    v_bfe_u32 v7, v0, 3, 1
    v_lshl_add_u32 v{vA0}, v7, 10, v6
    v_xor_b32 v{vA1}, 64, v{vA0}
    v_lshlrev_b32 v{v8l}, 3, v0
    s_lshr_b32 s26, s{sW}, 1
    s_and_b32 s27, s{sW}, 1
    s_mul_i32 s28, s{sCL}, 81920
    s_mul_i32 s29, s26, 10240
    s_add_u32 s28, s28, s29
    s_mul_i32 s29, s27, 640
    s_add_u32 s28, s28, s29
    s_add_u32 s28, s28, {XN}
    s_mul_i32 s29, s27, 10240
    s_lshl_b32 s26, s26, 10
    s_add_u32 s29, s29, s26
    s_lshl_b32 s40, s{sCL}, 3
    s_add_u32 s41, s40, s{sJ}
    s_mul_i32 s41, s41, 24576
    s_add_u32 s41, s41, {H}
    s_lshl_b32 s42, s{sW}, 9
    s_add_u32 s42, s42, s41
    s_add_u32 s42, s42, 4096
    s_lshl_b32 s43, s{sW}, 10
    s_add_u32 s41, s41, s43""")
    sync(k, vm, 0, 6)
    stamp(k, 'sync1', stamps)
    k("s_mov_b32 m0, s29")
    for mu in range(4):
        for i in range(5):
            vm.op(f"buffer_load_dwordx4 v{vD}, {WS}, s28 offen{SC} lds", ("xn", mu))
            if i < 4: k("s_add_u32 s28, s28, 128\ns_add_u32 m0, m0, 2048")
            elif mu < 3: k(f"s_add_u32 s28, s28, {20480 - 512}\ns_add_u32 m0, m0, {20480 - 8192}")
    w2n = [0]
    def w2reg(f): return f"v[{W2V+4*f}:{W2V+4*f+3}]" if f < 48 else f"a[{4*(f-48)}:{4*(f-48)+3}]"
    def w2load(n):
        for _ in range(n):
            f = w2n[0]; w2n[0] += 1
            vm.op(f"buffer_load_dwordx4 {w2reg(f)}, v3, {WS}, s38 offen offset:{1024*(f & 3)}", "w2")
            if f & 3 == 3: k("s_add_u32 s38, s38, 4096")
    def xread(s):
        mu, ka = divmod(s, 20); r = RING + 4*(s & 3)
        if mu == 3 and ka == 0: k(f"v_add_u32 v{vA0}, 61440, v{vA0}\nv_add_u32 v{vA1}, 61440, v{vA1}")
        k(f"ds_read_b128 v[{r}:{r+3}], v{vA1 if ka & 1 else vA0} offset:{(20480*mu if mu < 3 else 0) + 2048*(ka >> 1)}")
    def g1_epi(mu):
        a = ACC + 12*(mu & 1); ops = []
        for x in range(6): ops.append(f"v_cvt_pk_bf16_f32 v{PKO+x}, v{a+2*x}, v{a+2*x+1}")
        for x in range(6): ops.append(f"v_pk_max_i16 v{PKO+x}, v{PKO+x}, 0")
        ops.append(("vm", f"buffer_store_dwordx4 v[{PKO}:{PKO+3}], v3, {WS}, s41 offen sc1"))
        ops.append(("vm", f"buffer_store_dwordx2 v[{PKO+4}:{PKO+5}], v{v8l}, {WS}, s42 offen sc1"))
        ops.append("s_add_u32 s41, s41, 6144\ns_add_u32 s42, s42, 6144")
        return ops
    vm.wait(("xn", 0)); k("s_barrier")
    stamp(k, 'xn0', stamps)
    for s in range(3): xread(s)
    epi = []
    for s in range(80):
        mu, ka = divmod(s, 20)
        if ka == 16 and mu < 3:
            vm.wait(("xn", mu + 1)); k("s_barrier")
        if s + 3 < 80: xread(s + 3)
        k(f"s_waitcnt lgkmcnt({min(3, 79 - s)})")
        r = RING + 4*(s & 3)
        for nu in range(3):
            d = ACC + 12*(mu & 1) + 4*nu; f = 3*ka + nu
            c = "0" if ka == 0 else f"v[{d}:{d+3}]"
            k(f"v_mfma_f32_16x16x32_bf16 v[{d}:{d+3}], a[{4*f}:{4*f+3}], v[{r}:{r+3}], {c}")
            if nu == 0 and s < 48 and 'now2' not in OPT: w2load(1)
            if nu >= 1 and ka >= 3 and epi:
                o = epi.pop(0)
                if isinstance(o, tuple): vm.op(o[1], "hst")
                else: k(o)
        if ka == 19: epi = g1_epi(mu)
    for o in epi:
        if isinstance(o, tuple): vm.op(o[1], "hst")
        else: k(o)
    stamp(k, 'g1', stamps)
    if stop == "g1":
        stamp_flush(k, 1, stamps); k.put(done); k("s_endpgm"); return k, kc
    GA, HR = 48, 128
    vH8, vPW, vRS, vOS, RS2, S1C = 1, 4, 5, 6, 8, 18
    k(f"""v_add_u32 v{vH8}, 4096, v{v8l}
    s_lshl_b32 s26, s{sW}, 1
    s_add_u32 s26, s26, s40
    s_mul_i32 s26, s26, 24576
    s_add_u32 s26, s26, {H}
    s_add_u32 s27, s26, 24576
    v_and_b32 v7, 15, v0
    v_lshrrev_b32 v30, 4, v0
    v_lshlrev_b32 v30, 3, v30
    v_mul_u32_u24 v{vRS}, 1280, v7
    v_add_u32 v{vRS}, v{vRS}, v30
    s_mul_i32 s28, s{sCL}, 81920
    s_mul_i32 s29, s{sW}, 20480
    s_add_u32 s28, s28, s29
    s_mul_i32 s29, s{sJ}, 160
    s_add_u32 s28, s28, s29
    s_add_u32 s31, s28, {X2}
    s_add_u32 s28, s28, {X1}
    s_lshr_b32 s32, s{sW}, 1
    s_lshl_b32 s32, s32, 5
    s_and_b32 s33, s{sW}, 1
    s_lshl_b32 s33, s33, 10
    s_add_u32 s32, s32, s33
    s_add_u32 s32, s32, s{sSIG}
    s_mul_i32 s32, s32, 1280
    s_add_u32 s32, s32, s29
    s_cmp_eq_u32 s{sMODE}, 0
    s_cselect_b32 s31, s31, s32
    s_mov_b32 s32, 81920
    s_cselect_b32 s32, 1280, s32
    v_mul_lo_u32 v{vOS}, v7, s32
    v_add_u32 v{vOS}, v{vOS}, v30
    s_lshl_b32 s33, s{sW}, 11""")
    sync(k, vm, 1, 32, between=lambda: w2load(12))
    stamp(k, 'sync2', stamps)
    vm.q = ["w2"]*12
    def hload(mu, ks):
        pi, kp = divmod(ks, 6); r = HR + 48*(mu & 1) + 4*ks
        if kp < 4: vm.op(f"buffer_load_dwordx4 a[{r}:{r+3}], v3, {WS}, s{26+pi} offen offset:{1024*kp}{SC}", ("h", mu, ks))
        else:
            for x in range(2):
                vm.op(f"buffer_load_dwordx2 a[{r+2*x}:{r+2*x+1}], v{vH8}, {WS}, s{26+pi} offen offset:{512*(2*(kp-4)+x)}{SC}", ("h", mu, ks))
        if ks == 11: k("s_add_u32 s26, s26, 6144\ns_add_u32 s27, s27, 6144")
    for mu in range(2):
        for ks in range(12): hload(mu, ks)
    for de in range(5): vm.op(f"buffer_load_dwordx2 v[{RS2+2*de}:{RS2+2*de+1}], v{vRS}, {WS}, s28 offen offset:{32*de}{SC}", "rs2")
    for ka in range(2): vm.op(f"buffer_load_dwordx4 v[{S1C+4*ka}:{S1C+4*ka+3}], v3, {TS}, s33 offen offset:{T_S1 + 1024*ka}", "s1c")
    def pw_addr(mu):
        k(f"s_sub_u32 s34, s{sW}, {mu+1}\ns_and_b32 s34, s34, 3\ns_mul_i32 s34, s34, 5120\ns_add_u32 s34, s34, {20480*mu}\nv_add_u32 v{vPW}, s34, v3")
    for mu in range(4):
        for ks in range(12):
            vm.wait(("h", mu, ks))
            if ks == 0: stamp(k, f'g2w{mu}', stamps)
            r = HR + 48*(mu & 1) + 4*ks
            for de in range(5):
                d = GA + 20*mu + 4*de
                c = "0" if ks == 0 else f"a[{d}:{d+3}]"
                k(f"v_mfma_f32_16x16x32_bf16 a[{d}:{d+3}], {w2reg(5*ks + de)}, a[{r}:{r+3}], {c}")
                if de == 1 and mu >= 1 and ks == 0: pw_addr(mu - 1)
                if de == 2 and mu >= 1 and 2 <= ks < 7:
                    dd = GA + 20*(mu - 1) + 4*(ks - 2)
                    k(f"ds_write_b128 v{vPW}, a[{dd}:{dd+3}] offset:{1024*(ks - 2)}")
            if mu < 2: hload(mu + 2, ks)
    pw_addr(3)
    for de in range(5):
        dd = GA + 60 + 4*de
        k(f"ds_write_b128 v{vPW}, a[{dd}:{dd+3}] offset:{1024*de}")
    stamp(k, 'g2', stamps)
    OWN, PR = 64, 84
    ls = [k.label("own") for _ in range(5)]
    for mu in range(4):
        k.put(ls[mu])
        if mu < 3: k(f"s_cmp_lg_u32 s{sW}, {mu}\ns_cbranch_scc1 {ls[mu+1]}")
        for x in range(20): k(f"v_accvgpr_read_b32 v{OWN+x}, a{GA+20*mu+x}")
        if mu < 3: k(f"s_branch {ls[4]}")
    k.put(ls[4])
    k(f"s_mul_i32 s34, s{sW}, 20480\nv_add_u32 v{vPW}, s34, v3")
    vm.wait("rs2", "s1c")
    k("s_waitcnt lgkmcnt(0)\ns_barrier")
    for sl in range(3):
        for de in range(5):
            r = PR + 20*sl + 4*de
            k(f"ds_read_b128 v[{r}:{r+3}], v{vPW} offset:{5120*sl + 1024*de}")
    TU = 144
    for x in range(10): k(f"v_lshlrev_b32 v{TU+2*x}, 16, v{RS2+x}\nv_and_b32 v{TU+2*x+1}, 0xffff0000, v{RS2+x}")
    for x in range(10): k(f"v_pk_add_f32 v[{OWN+2*x}:{OWN+2*x+1}], v[{OWN+2*x}:{OWN+2*x+1}], v[{TU+2*x}:{TU+2*x+1}]")
    for sl in range(3):
        for de in range(5):
            k(f"s_waitcnt lgkmcnt({14 - 5*sl - de})")
            for x in range(2):
                o, r = OWN + 4*de + 2*x, PR + 20*sl + 4*de + 2*x
                k(f"v_pk_add_f32 v[{o}:{o+1}], v[{o}:{o+1}], v[{r}:{r+1}]")
    for x in range(10): k(f"v_cvt_pk_bf16_f32 v{RS2+x}, v{OWN+2*x}, v{OWN+2*x+1}")
    for de in range(5): vm.op(f"buffer_store_dwordx2 v[{RS2+2*de}:{RS2+2*de+1}], v{vOS}, {OS}, s31 offen offset:{32*de}", "ost")
    stamp(k, 'red', stamps)
    fin = k.label("fin")
    k(f"s_cmp_eq_u32 s{sMODE}, 1\ns_cbranch_scc1 {fin}")
    def redg(a, t):
        k(f"v_mov_b32 v{t}, v{a}\nv_permlane16_swap_b32 v{t}, v{a}\nv_add_f32 v{a}, v{a}, v{t}\nv_mov_b32 v{t}, v{a}\nv_permlane32_swap_b32 v{t}, v{a}\nv_add_f32 v{a}, v{a}, v{t}")
    SA = 30
    k(f"v_pk_add_f32 v[{SA}:{SA+1}], v[{OWN}:{OWN+1}], v[{OWN+2}:{OWN+3}]")
    for x in range(2, 10): k(f"v_pk_add_f32 v[{SA}:{SA+1}], v[{SA}:{SA+1}], v[{OWN+2*x}:{OWN+2*x+1}]")
    k(f"v_add_f32 v{SA}, v{SA}, v{SA+1}")
    redg(SA, SA + 1)
    k(f"v_mul_f32 v{SA+2}, 0x3c4ccccd, v{SA}")
    for x in range(10): k(f"v_pk_add_f32 v[{TU+2*x}:{TU+2*x+1}], v[{OWN+2*x}:{OWN+2*x+1}], v[{SA+2}:{SA+3}] op_sel_hi:[1,0] neg_lo:[0,1] neg_hi:[0,1]")
    k(f"v_pk_mul_f32 v[{SA+4}:{SA+5}], v[{TU}:{TU+1}], v[{TU}:{TU+1}]")
    for x in range(1, 10): k(f"v_pk_fma_f32 v[{SA+4}:{SA+5}], v[{TU+2*x}:{TU+2*x+1}], v[{TU+2*x}:{TU+2*x+1}], v[{SA+4}:{SA+5}]")
    k(f"v_add_f32 v{SA+4}, v{SA+4}, v{SA+5}")
    redg(SA + 4, SA + 5)
    k(f"""v_mov_b32 v{SA+1}, v{SA+4}
    v_lshlrev_b32 v7, 3, v7
    s_lshl_b32 s34, s{sCL}, 12
    s_lshl_b32 s35, s{sW}, 7
    s_add_u32 s34, s34, s35
    s_add_u32 s34, s34, {ST}
    s_lshl_b32 s35, s{sJ}, 9
    s_add_u32 s35, s35, s34
    s_mov_b64 exec, 0xffff
    buffer_store_dwordx2 v[{SA}:{SA+1}], v7, {WS}, s35 offen sc1
    s_mov_b64 exec, -1
    v_lshrrev_b32 v{SA+2}, 4, v0
    v_lshl_add_u32 v7, v{SA+2}, 10, v7""")
    body, body4 = s1_stage(k, vm, LX, sW, S1C, [0, 1], True, U1, 170)
    k(f"""v_and_b32 v{SA+3}, 15, v0
    v_mul_u32_u24 v{SA+3}, 160, v{SA+3}
    v_lshl_add_u32 v{SA+3}, v{SA+2}, 3, v{SA+3}
    s_mul_i32 s35, s{sW}, 2560
    s_add_u32 s35, s35, {LX}
    v_add_u32 v{SA+3}, s35, v{SA+3}
    s_mov_b32 s57, 0""")
    lp, ok = k.label("sp"), k.label("sok")
    P = 36
    k.put(lp)
    k(f"""buffer_load_dwordx2 v[{P}:{P+1}], v7, {WS}, s34 offen sc1
    buffer_load_dwordx2 v[{P+2}:{P+3}], v7, {WS}, s34 offen offset:512 sc1
    s_add_u32 s57, s57, 1
    s_cmp_gt_u32 s57, 0x80000
    s_cbranch_scc1 {ok}
    s_waitcnt vmcnt(0)
    v_and_b32 v{P+4}, v{P}, v{P+1}
    v_and_b32 v{P+5}, v{P+2}, v{P+3}
    v_max_u32 v{P+4}, v{P+4}, v{P+5}
    v_cmp_eq_u32 vcc, -1, v{P+4}
    s_cbranch_vccnz {lp}""")
    k.put(ok)
    vm.drain()
    stamp(k, 'stats', stamps)
    k(f"v_add_f32 v{SA}, v{P}, v{P+2}")
    redg(SA, SA + 1)
    k(f"""v_mul_f32 v{SA}, 0x3acccccd, v{SA}
    v_fma_f32 v{P}, v{P}, s45, -v{SA}
    v_fma_f32 v{P+2}, v{P+2}, s45, -v{SA}
    v_mul_f32 v{P}, v{P}, v{P}
    v_fmac_f32 v{P}, v{P+2}, v{P+2}
    v_add_f32 v{P+1}, v{P+1}, v{P+3}
    v_fmac_f32 v{P+1}, 0x42a00000, v{P}""".replace("v_mul_f32 v30, 0x3acccccd, v30", "s_mov_b32 s45, 0x3c4ccccd\n    v_mul_f32 v30, 0x3acccccd, v30"))
    redg(P + 1, P)
    k(f"""v_mov_b32 v{SA+1}, 0x3727c5ac
    v_fmac_f32 v{SA+1}, 0x3acccccd, v{P+1}
    v_rsq_f32 v{SA+1}, v{SA+1}
    s_nop 0
    v_mul_f32 v{SA}, v{SA}, v{SA+1}""")
    for x in range(10):
        o = OWN + 2*x
        k(f"v_pk_fma_f32 v[{o}:{o+1}], v[{o}:{o+1}], v[{SA}:{SA+1}], v[{SA}:{SA+1}] op_sel:[0,1,0] op_sel_hi:[1,1,0] neg_lo:[0,0,1] neg_hi:[0,0,1]")
    for x in range(10): k(f"v_cvt_pk_f16_f32 v{TU+x}, v{OWN+2*x}, v{OWN+2*x+1}")
    for de in range(5): k(f"ds_write_b64 v{SA+3}, v[{TU+2*de}:{TU+2*de+1}] offset:{32*de}")
    k("s_waitcnt lgkmcnt(0)\ns_barrier")
    body(); body4()
    stamp(k, 's1', stamps)
    k.put(fin)
    stamp_flush(k, 1, stamps, sadd=sMODE)
    k.put(done); k("s_endpgm")
    return k, kc

if __name__ == "__main__":
    path = sys.argv[1]; opts = sys.argv[2].split(",") if len(sys.argv) > 2 else []
    st = "stamp" in opts; OPT.update(opts)
    stop = "p2" if "p2" in opts else "g1" if "g1" in opts else None
    kb, kc = gen_kb(st, stop)
    L = [gen_ka(st, 'dbg' in opts), kb] + ([kc] if "nokc" not in opts and not stop else [])
    finish(L, path)
```

```python
from fnet import *
LV, LHB, LX = 98304, 118912, 81920
sMODE = 59
def poll(k, addr_s, nl, target, vt):
    lp, ok = k.label("poll"), k.label("ok")
    k(f"s_mov_b32 s57, 0")
    k.put(lp)
    k(f"""buffer_load_dword v{vt+1}, v{vt}, {WS}, s{addr_s} offen sc1
    s_add_u32 s57, s57, 1
    s_cmp_gt_u32 s57, 0x80000
    s_cbranch_scc1 {ok}
    s_waitcnt vmcnt(0)
    v_cmp_gt_u32 vcc, {target}, v{vt+1}
    s_cbranch_vccnz {lp}""")
    k.put(ok)
    k("s_waitcnt vmcnt(0)")
def sync(k, vm, kind, vt, between=None):
    vm.drain(); k("s_barrier")
    sk = k.label("nf")
    if between: between()
    k(f"""s_cmp_lg_u32 s{sW}, 0
    s_cbranch_scc1 {sk}
    s_lshl_b32 s24, s{sMODE}, 13
    s_lshl_b32 s25, s{sCL}, 7
    s_add_u32 s24, s24, s25
    s_add_u32 s24, s24, {FL + 4096*kind}
    s_lshl_b32 s25, s{sJ}, 4
    s_add_u32 s25, s25, s24
    v_mov_b32 v{vt}, 0
    v_mov_b32 v{vt+1}, 1
    s_mov_b64 exec, 1
    buffer_store_dword v{vt+1}, v{vt}, {WS}, s25 offen sc1
    s_mov_b64 exec, -1
    v_and_b32 v{vt}, 7, v0
    v_lshlrev_b32 v{vt}, 4, v{vt}""")
    poll(k, 24, 8, 1, vt)
    k.put(sk)
    k("s_barrier")

OPT = set()
def gen_kb(stamps=False, stop=None):
    SC = '' if 'nosc' in OPT else ' sc1'
    k = K("kb_kernel", 256, 256, lds=160*1024, vgpr=256, agpr=256)
    kc = K("kc_kernel", 256, 256, lds=160*1024, vgpr=256, agpr=256)
    kc(f"s_mov_b32 s{sMODE}, 1\ns_branch kbc_common")
    k(f"s_mov_b32 s{sMODE}, 0"); k.put("kbc_common")
    done = k.label("done")
    ids(k, done)
    k("s_load_dwordx2 s[8:9], s[0:1], 0\ns_load_dwordx2 s[12:13], s[0:1], 64\ns_load_dwordx2 s[4:5], s[0:1], 80")
    stamp(k, 'start', stamps)
    tblsrd(k); ids2(k)
    vm = VM(k)
    k(f"""s_mov_b32 s6, 0x10000000
    s_mov_b32 s7, 0x20000
    s_mov_b32 s11, 0x20000
    s_mov_b32 s15, 0x20000
    s_lshr_b32 s24, s{sJ}, 2
    s_sub_u32 s25, 32, s{sSIG}
    s_and_b32 s25, s25, 31
    s_cmp_eq_u32 s24, 0
    s_cselect_b32 s25, s{sSIG}, s25
    s_mul_i32 s25, s25, 81920
    s_mul_i32 s26, s{sW}, 3
    s_lshl_b32 s27, s{sW}, 1
    s_add_u32 s27, s27, 2
    s_cmp_lt_u32 s{sW}, 2
    s_cselect_b32 s26, s26, s27
    s_lshl_b32 s27, s26, 13
    s_add_u32 s25, s25, s27
    s_mul_i32 s27, s{sMODE}, {U1 - U0}
    s_add_u32 s25, s25, s27
    s_lshl_b32 s28, s26, 9
    s_mul_i32 s29, s{sW}, 24576
    v_lshrrev_b32 v1, 3, v0
    v_lshlrev_b32 v1, 7, v1
    v_bfe_u32 v2, v0, 4, 2
    v_lshlrev_b32 v2, 1, v2
    v_and_b32 v3, 7, v0
    v_xor_b32 v2, v2, v3
    v_lshl_add_u32 v1, v2, 4, v1
    v_lshlrev_b32 v3, 4, v0
    v_bfe_u32 v2, v0, 3, 1
    v_lshlrev_b32 v2, 2, v2
    v_lshrrev_b32 v4, 4, v0
    v_add_u32 v2, v2, v4
    v_lshlrev_b32 v2, 6, v2
    s_mov_b32 m0, s29
    s_waitcnt lgkmcnt(0)""")
    S2C, HAC, TW, RES, HBC, OP, DD, PK, TMP, HD, WO, TT = 16, 24, 32, 80, 92, 128, 160, 176, 184, 186, 202, 210
    def udma(i):
        for x in range(8):
            if x == 4: k("s_add_u32 s25, s25, 4096\ns_add_u32 m0, m0, 4096")
            vm.op(f"buffer_load_dwordx4 v1, {WS}, s25 offen offset:{1024*(x & 3)} lds", ("u", i))
        k("s_add_u32 s25, s25, 4096\ns_add_u32 m0, m0, 4096")
    def twl(i):
        o = T_TW + 512*i
        k(f"s_add_u32 s30, s28, {o}")
        for x in range(4):
            vm.op(f"buffer_load_dwordx4 v[{TW+16*i+4*x}:{TW+16*i+4*x+3}], v2, {TS}, s30 offen offset:{16*x}", ("tw", i))
    udma(0)
    k(f"s_mov_b32 s30, {T_HA}")
    for T in range(2): vm.op(f"buffer_load_dwordx4 v[{HAC+4*T}:{HAC+4*T+3}], v3, {TS}, s30 offen offset:{1024*T}", "ha")
    twl(0); udma(1); twl(1)
    k(f"s_cmp_lt_u32 s{sW}, 2\ns_cselect_b32 s25, s25, {OOB}")
    udma(2); twl(2)
    k(f"s_lshl_b32 s30, s{sW}, 11\ns_add_u32 m0, s30, {LHB}\ns_add_u32 s30, s30, {T_HB}")
    for x in range(2): vm.op(f"buffer_load_dwordx4 v3, {TS}, s30 offen offset:{1024*x} lds", "hb")
    k(f"s_mov_b32 m0, {LHB + 8192}\ns_mov_b32 s30, {T_HB + 8192}")
    vm.op(f"buffer_load_dwordx4 v3, {TS}, s30 offen lds", "hb")
    m0l, m1l = k.label("m0"), k.label("m1")
    k(f"""s_mul_i32 s33, s{sCL}, 81920
    s_lshl_b32 s34, s{sJ}, 2
    s_add_u32 s34, s34, s{sW}
    s_mul_i32 s34, s34, 2560
    s_add_u32 s33, s33, s34
    s_and_b32 s35, s{sJ}, 3
    s_lshl_b32 s35, s35, 9
    s_lshl_b32 s36, s24, 5
    s_add_u32 s35, s35, s36
    s_add_u32 s35, s35, s{sSIG}
    s_cmp_eq_u32 s{sMODE}, 0
    s_cbranch_scc0 {m1l}
    s_lshl_b32 s31, s{sW}, 7
    s_add_u32 s31, s31, s35
    s_mul_i32 s31, s31, 1280
    s_add_u32 s32, s31, 81920
    s_mov_b32 s10, {S*D*2}
    s_mov_b32 s12, s4
    s_mov_b32 s13, s5
    s_mov_b32 s14, 0x10000000
    s_branch {m0l}""")
    k.put(m1l)
    k(f"""s_add_u32 s31, s33, {X2}
    s_add_u32 s32, s31, 1280
    s_mov_b32 s8, s4
    s_mov_b32 s9, s5
    s_mov_b32 s10, 0x10000000
    s_mov_b32 s14, {S*D*2}""")
    k.put(m0l)
    k(f"""v_and_b32 v15, 15, v0
    v_lshlrev_b32 v11, 5, v15
    v_lshl_add_u32 v13, v4, 3, v11
    v_cmp_gt_u32 vcc, 8, v15
    v_mov_b32 v12, {OOB}
    v_lshrrev_b32 v14, 5, v0
    v_lshl_add_u32 v14, v14, 4, v11
    v_mov_b32 v11, v13
    v_cndmask_b32 v12, v12, v11, vcc
    v_bfe_u32 v13, v0, 4, 1
    v_mul_u32_u24 v13, 1280, v13
    v_add_u32 v13, v13, v14
    v_mov_b32 v14, {OOB}
    v_cndmask_b32 v14, v14, v13, vcc
    v_cndmask_b32 v212, 0, 1.0, vcc""")
    for R in range(2):
        for tp in range(3):
            r = RES + 6*R + 2*tp
            vm.op(f"buffer_load_dwordx2 v[{r}:{r+1}], v{12 if tp == 2 else 11}, {XS}, s{31+R} offen offset:{512*tp}", "res")
    k(f"""s_lshl_b32 s37, s{sJ}, 2
    s_add_u32 s37, s37, s{sW}
    s_mul_i32 s37, s37, 61440
    s_add_u32 s38, s37, {W2F}
    s_add_u32 s37, s37, {W1F}""")
    w1n = [0]
    def w1load(n):
        for _ in range(n):
            f = w1n[0]; w1n[0] += 1
            vm.op(f"buffer_load_dwordx4 a[{4*f}:{4*f+3}], v3, {WS}, s37 offen offset:{1024*(f & 3)}", "w1")
            if f & 3 == 3: k("s_add_u32 s37, s37, 4096")
    w1load(16)
    k(f"""v_and_b32 v5, 7, v0
    v_lshl_add_u32 v5, v5, 6, s35
    v_cvt_f32_u32 v5, v5
    v_mul_f32 v5, 0x3a000000, v5
    v_lshlrev_b32 v6, 1, v4
    v_cvt_f32_u32 v6, v6
    v_bfe_u32 v7, v0, 3, 1
    v_cvt_f32_u32 v7, v7
    v_mul_f32 v7, 0x3e800000, v7
    v_fmac_f32 v7, v5, v6
    s_cmp_eq_u32 s{sSIG}, 0
    s_cselect_b32 s39, 1, 0
    s_and_b32 s40, s39, s24
    s_cmp_eq_u32 s24, 0
    s_cselect_b32 s42, 0x3e000000, 0xbe000000
    s_cmp_eq_u32 s39, 1
    s_cselect_b32 s42, 0, s42
    s_cmp_eq_u32 s40, 1
    s_cselect_b32 s41, 0, 0x3e000000
    s_cselect_b32 s42, 0x3e000000, s42
    s_cselect_b32 s43, 0, 0xbe800000""".replace("s_cselect_b32 s42, 0x3e000000, 0xbe000000", "s_mov_b32 s42, 0xbe000000\n    s_cselect_b32 s42, 0x3e000000, s42"))
    import struct
    fl = lambda x: "0x%08x" % struct.unpack("<I", struct.pack("<f", x))[0]
    for ka in range(2):
        for h in range(2):
            for u in range(2):
                c = 16*ka + 8*h + u; t = OP + 4*(4*ka + 2*h + u)
                k(f"v_fmamk_f32 v{t}, v5, {fl(c)}, v7\nv_add_f32 v{t+1}, s43, v{t}\nv_cos_f32 v{t}, v{t}\nv_cos_f32 v{t+1}, v{t+1}")
    for x in range(8):
        t = OP + 4*x
        k(f"v_mul_f32 v{t}, s41, v{t}\nv_mul_f32 v{t+1}, s42, v{t+1}\nv_cvt_pk_f16_f32 v{S2C+x}, v{t}, v{t+1}")
    k(f"""v_lshrrev_b32 v5, 2, v0
    v_lshlrev_b32 v5, 7, v5
    v_and_b32 v6, 3, v0
    v_lshl_add_u32 v5, v6, 3, v5
    v_bfe_u32 v6, v0, 3, 2
    v_lshl_add_u32 v5, v6, 5, v5
    v_add_u32 v5, s29, v5
    v_and_b32 v8, 7, v0
    v_mul_u32_u24 v8, 2576, v8
    v_mul_u32_u24 v9, 320, v4
    v_add_u32 v8, v8, v9
    v_bfe_u32 v9, v0, 3, 1
    v_lshl_add_u32 v8, v9, 3, v8
    s_lshl_b32 s30, s26, 4
    s_add_u32 s30, s30, {LV}
    v_add_u32 v8, s30, v8
    s_mul_i32 s30, s{sW}, 5152
    s_add_u32 s30, s30, {LV}
    v_mul_u32_u24 v9, 160, v15
    v_add_u32 v9, s30, v9
    v_bfe_u32 v10, v0, 4, 1
    v_lshl_add_u32 v10, v10, 4, v9
    v_lshl_add_u32 v9, v4, 4, v9
    v_xor_b32 v6, 64, v5
    v_xor_b32 v7, 96, v5
    v_mov_b32 v4, v5
    v_xor_b32 v5, 32, v5""")
    stamp(k, 'setup', stamps)
    for i in range(3):
        vm.wait(("tw", i), "ha") if i == 0 else vm.wait(("tw", i))
        sk = None
        if i == 2:
            sk = k.label("q2"); k(f"s_cmp_ge_u32 s{sW}, 2\ns_cbranch_scc1 {sk}")
        for t in range(4):
            for ka in range(2):
                for h in range(2):
                    r = OP + 8*t + 4*ka + 2*h
                    k(f"ds_read_b64_tr_b16 v[{r}:{r+1}], v{4+t} offset:{8192*i + 4096*ka + 2048*h}")
        if i < 2: w1load(12)
        for t in range(4):
            for ka in range(2):
                r = OP + 8*t + 4*ka
                k(f"s_waitcnt lgkmcnt({14 - 4*t - 2*ka})")
                c = "0" if ka == 0 else f"v[{DD+4*t}:{DD+4*t+3}]"
                k(f"v_mfma_f32_16x16x32_f16 v[{DD+4*t}:{DD+4*t+3}], v[{r}:{r+3}], v[{S2C+4*ka}:{S2C+4*ka+3}], {c}")
        for hp in range(2):
            for r in range(4):
                k(f"v_cvt_pk_f16_f32 v{PK+2*r+hp}, v{DD+8*hp+r}, v{DD+8*hp+4+r}")
        for p in range(2):
            for hp in range(2): k(f"v_mov_b32 v{TMP+hp}, v{PK+4*p+hp}")
            for hp in range(2): k(f"v_mov_b32_dpp v{PK+4*p+hp}, v{PK+4*p+2+hp} row_ror:8 row_mask:0xf bank_mask:0xc")
            for hp in range(2): k(f"v_mov_b32_dpp v{PK+4*p+2+hp}, v{TMP+hp} row_ror:8 row_mask:0xf bank_mask:0x3")
        for p in range(2):
            for T in range(2):
                d = HD + 8*p + 4*T
                k(f"v_mfma_f32_16x16x32_f16 v[{d}:{d+3}], v[{HAC+4*T}:{HAC+4*T+3}], v[{PK+4*p}:{PK+4*p+3}], 0")
        for p in range(2):
            for T in range(2):
                for u in range(2):
                    d = HD + 8*p + 4*T + 2*u; w = TW + 16*i + 8*p + 4*T + 2*u; t = DD + 2*(4*p + 2*T + u)
                    k(f"v_pk_mul_f32 v[{t}:{t+1}], v[{d}:{d+1}], v[{w}:{w+1}] op_sel_hi:[1,0]")
                    k(f"v_pk_fma_f32 v[{t}:{t+1}], v[{d}:{d+1}], v[{w}:{w+1}], v[{t}:{t+1}] op_sel:[1,1,0] op_sel_hi:[0,1,1] neg_hi:[1,0,0]")
                    k(f"v_cvt_pk_f16_f32 v{WO+2*(2*T+u)+p}, v{t}, v{t+1}")
        for T in range(2):
            for u in range(2):
                r = WO + 2*(2*T + u)
                k(f"ds_write_b64 v8, v[{r}:{r+1}] offset:{(8*T + u)*160 + 16*i}")
        if sk: k.put(sk)
    vm.wait("hb")
    w1load(20)
    stamp(k, 'quads', stamps)
    k("s_waitcnt lgkmcnt(0)\ns_barrier")
    k(f"v_add_u32 v213, {LHB}, v3")
    order = []
    for ks in range(3):
        for R in range(2):
            r = OP + 12*R + 4*ks
            k(f"ds_read_b128 v[{r}:{r+3}], v{10 if ks == 2 else 9} offset:{2576*R + 64*ks}")
        for tp in range(3):
            r = HBC + 4*(3*tp + ks)
            k(f"ds_read_b128 v[{r}:{r+3}], v213 offset:{1024*(3*tp + ks)}")
    for ks in range(3):
        for tp in range(3):
            k(f"s_waitcnt lgkmcnt({12 - 5*ks - tp})")
            for R in range(2):
                d = DD + 12*R + 4*tp; a = OP + 12*R + 4*ks; b = HBC + 4*(3*tp + ks)
                c = "0" if ks == 0 else f"v[{d}:{d+3}]"
                k(f"v_mfma_f32_16x16x32_f16 v[{d}:{d+3}], v[{a}:{a+3}], v[{b}:{b+3}], {c}")
    vm.wait("res")
    TU = 32
    for x in range(12): k(f"v_lshlrev_b32 v{TU+2*x}, 16, v{RES+x}\nv_and_b32 v{TU+2*x+1}, 0xffff0000, v{RES+x}")
    k("s_mov_b32 s44, 0x41000000")
    for x in range(12):
        k(f"v_pk_fma_f32 v[{DD+2*x}:{DD+2*x+1}], v[{DD+2*x}:{DD+2*x+1}], s[44:45], v[{TU+2*x}:{TU+2*x+1}] op_sel_hi:[1,0,1]")
    Q = 56
    def packstore(base, tagname):
        for tp in range(3):
            for R in range(2):
                for x in range(2):
                    s = DD + 12*R + 4*tp + 2*x
                    k(f"v_cvt_pk_bf16_f32 v{Q+4*tp+2*R+x}, v{s}, v{s+1}")
        k(f"s_add_u32 s30, s33, {base}")
        for tp in range(3):
            for x in range(2): k(f"v_permlane16_swap_b32 v{Q+4*tp+x}, v{Q+4*tp+2+x}")
            vm.op(f"buffer_store_dwordx4 v[{Q+4*tp}:{Q+4*tp+3}], v{14 if tp == 2 else 13}, {WS}, s30 offen offset:{512*tp} sc1", tagname)
    def reduce2(a, b, t):
        k(f"""v_permlane32_swap_b32 v{a}, v{b}
        v_add_f32 v{a}, v{a}, v{b}
        v_mov_b32 v{t}, v{a}
        v_permlane16_swap_b32 v{t}, v{a}
        v_add_f32 v{a}, v{a}, v{t}""")
        for m in ("quad_perm:[1,0,3,2]", "quad_perm:[2,3,0,1]", "row_half_mirror", "row_mirror"):
            k(f"v_add_f32_dpp v{a}, v{a}, v{a} {m} row_mask:0xf bank_mask:0xf")
    SA = 70
    for R in range(2):
        k(f"v_pk_add_f32 v[{SA+2*R}:{SA+2*R+1}], v[{DD+12*R}:{DD+12*R+1}], v[{DD+12*R+2}:{DD+12*R+3}]")
    for x in range(2, 6):
        for R in range(2):
            k(f"v_pk_add_f32 v[{SA+2*R}:{SA+2*R+1}], v[{SA+2*R}:{SA+2*R+1}], v[{DD+12*R+2*x}:{DD+12*R+2*x+1}]")
    for R in range(2): k(f"v_add_f32 v{SA+2*R}, v{SA+2*R}, v{SA+2*R+1}")
    reduce2(SA, SA + 2, SA + 1)
    k(f"v_mul_f32 v{SA}, 0x3acccccd, v{SA}")
    packstore(X1, "x1st")
    k(f"v_readlane_b32 s46, v{SA}, 0\nv_readlane_b32 s48, v{SA}, 32")
    for R in range(2):
        for x in range(6):
            d = DD + 12*R + 2*x
            if x < 4: k(f"v_pk_add_f32 v[{d}:{d+1}], v[{d}:{d+1}], s[{46+2*R}:{47+2*R}] op_sel_hi:[1,0] neg_lo:[0,1] neg_hi:[0,1]")
            else: k(f"v_pk_fma_f32 v[{d}:{d+1}], v[212:213], s[{46+2*R}:{47+2*R}], v[{d}:{d+1}] op_sel_hi:[0,0,1] neg_lo:[0,1,0] neg_hi:[0,1,0]")
    for R in range(2):
        k(f"v_pk_mul_f32 v[{SA+2*R}:{SA+2*R+1}], v[{DD+12*R}:{DD+12*R+1}], v[{DD+12*R}:{DD+12*R+1}]")
    for x in range(1, 6):
        for R in range(2):
            d = DD + 12*R + 2*x
            k(f"v_pk_fma_f32 v[{SA+2*R}:{SA+2*R+1}], v[{d}:{d+1}], v[{d}:{d+1}], v[{SA+2*R}:{SA+2*R+1}]")
    for R in range(2): k(f"v_add_f32 v{SA+2*R}, v{SA+2*R}, v{SA+2*R+1}")
    reduce2(SA, SA + 2, SA + 1)
    k(f"v_mov_b32 v{SA+1}, 0x3727c5ac\nv_fmac_f32 v{SA+1}, 0x3acccccd, v{SA}\nv_rsq_f32 v{SA}, v{SA+1}\ns_nop 0")
    k(f"v_readlane_b32 s46, v{SA}, 0\nv_readlane_b32 s48, v{SA}, 32")
    for R in range(2):
        for x in range(6):
            d = DD + 12*R + 2*x
            k(f"v_pk_mul_f32 v[{d}:{d+1}], v[{d}:{d+1}], s[{46+2*R}:{47+2*R}] op_sel_hi:[1,0]")
    Q = 72
    packstore(XN, "xnst")
    stamp(k, 'hb_ln', stamps)
    if stop == "p2":
        stamp_flush(k, 1, stamps); k.put(done); k("s_endpgm"); return k, kc
    vD, vA0, vA1, v8l, RING, ACC, PKO = 1, 4, 5, 2, 8, 24, 48
    W2V = 64
    k(f"""v_lshrrev_b32 v6, 3, v0
    v_and_b32 v7, 7, v0
    v_xor_b32 v7, v7, v6
    v_mul_u32_u24 v{vD}, 1280, v6
    v_lshl_add_u32 v{vD}, v7, 4, v{vD}
    v_lshrrev_b32 v6, 4, v0
    v_and_b32 v7, 7, v0
    v_xor_b32 v6, v6, v7
    v_lshlrev_b32 v6, 4, v6
    v_lshl_add_u32 v6, v7, 7, v6
    v_bfe_u32 v7, v0, 3, 1
    v_lshl_add_u32 v{vA0}, v7, 10, v6
    v_xor_b32 v{vA1}, 64, v{vA0}
    v_lshlrev_b32 v{v8l}, 3, v0
    s_lshr_b32 s26, s{sW}, 1
    s_and_b32 s27, s{sW}, 1
    s_mul_i32 s28, s{sCL}, 81920
    s_mul_i32 s29, s26, 10240
    s_add_u32 s28, s28, s29
    s_mul_i32 s29, s27, 640
    s_add_u32 s28, s28, s29
    s_add_u32 s28, s28, {XN}
    s_mul_i32 s29, s27, 10240
    s_lshl_b32 s26, s26, 10
    s_add_u32 s29, s29, s26
    s_lshl_b32 s40, s{sCL}, 3
    s_add_u32 s41, s40, s{sJ}
    s_mul_i32 s41, s41, 24576
    s_add_u32 s41, s41, {H}
    s_lshl_b32 s42, s{sW}, 9
    s_add_u32 s42, s42, s41
    s_add_u32 s42, s42, 4096
    s_lshl_b32 s43, s{sW}, 10
    s_add_u32 s41, s41, s43""")
    sync(k, vm, 0, 6)
    stamp(k, 'sync1', stamps)
    k("s_mov_b32 m0, s29")
    for mu in range(4):
        for i in range(5):
            vm.op(f"buffer_load_dwordx4 v{vD}, {WS}, s28 offen{SC} lds", ("xn", mu))
            if i < 4: k("s_add_u32 s28, s28, 128\ns_add_u32 m0, m0, 2048")
            elif mu < 3: k(f"s_add_u32 s28, s28, {20480 - 512}\ns_add_u32 m0, m0, {20480 - 8192}")
    w2n = [0]
    def w2reg(f): return f"v[{W2V+4*f}:{W2V+4*f+3}]" if f < 48 else f"a[{4*(f-48)}:{4*(f-48)+3}]"
    def w2load(n):
        for _ in range(n):
            f = w2n[0]; w2n[0] += 1
            vm.op(f"buffer_load_dwordx4 {w2reg(f)}, v3, {WS}, s38 offen offset:{1024*(f & 3)}", "w2")
            if f & 3 == 3: k("s_add_u32 s38, s38, 4096")
    def xread(s):
        mu, ka = divmod(s, 20); r = RING + 4*(s & 3)
        if mu == 3 and ka == 0: k(f"v_add_u32 v{vA0}, 61440, v{vA0}\nv_add_u32 v{vA1}, 61440, v{vA1}")
        k(f"ds_read_b128 v[{r}:{r+3}], v{vA1 if ka & 1 else vA0} offset:{(20480*mu if mu < 3 else 0) + 2048*(ka >> 1)}")
    def g1_epi(mu):
        a = ACC + 12*(mu & 1); ops = []
        for x in range(6): ops.append(f"v_cvt_pk_bf16_f32 v{PKO+x}, v{a+2*x}, v{a+2*x+1}")
        for x in range(6): ops.append(f"v_pk_max_i16 v{PKO+x}, v{PKO+x}, 0")
        ops.append(("vm", f"buffer_store_dwordx4 v[{PKO}:{PKO+3}], v3, {WS}, s41 offen sc1"))
        ops.append(("vm", f"buffer_store_dwordx2 v[{PKO+4}:{PKO+5}], v{v8l}, {WS}, s42 offen sc1"))
        ops.append("s_add_u32 s41, s41, 6144\ns_add_u32 s42, s42, 6144")
        return ops
    vm.wait(("xn", 0)); k("s_barrier")
    stamp(k, 'xn0', stamps)
    for s in range(3): xread(s)
    epi = []
    for s in range(80):
        mu, ka = divmod(s, 20)
        if ka == 16 and mu < 3:
            vm.wait(("xn", mu + 1)); k("s_barrier")
        if s + 3 < 80: xread(s + 3)
        k(f"s_waitcnt lgkmcnt({min(3, 79 - s)})")
        r = RING + 4*(s & 3)
        for nu in range(3):
            d = ACC + 12*(mu & 1) + 4*nu; f = 3*ka + nu
            c = "0" if ka == 0 else f"v[{d}:{d+3}]"
            k(f"v_mfma_f32_16x16x32_bf16 v[{d}:{d+3}], a[{4*f}:{4*f+3}], v[{r}:{r+3}], {c}")
            if nu == 0 and s < 48 and 'now2' not in OPT: w2load(1)
            if nu >= 1 and ka >= 3 and epi:
                o = epi.pop(0)
                if isinstance(o, tuple): vm.op(o[1], "hst")
                else: k(o)
        if ka == 19: epi = g1_epi(mu)
    for o in epi:
        if isinstance(o, tuple): vm.op(o[1], "hst")
        else: k(o)
    stamp(k, 'g1', stamps)
    if stop == "g1":
        stamp_flush(k, 1, stamps); k.put(done); k("s_endpgm"); return k, kc
    GA, HR = 48, 128
    vH8, vPW, vRS, vOS, RS2, S1C = 1, 4, 5, 6, 8, 18
    k(f"""v_add_u32 v{vH8}, 4096, v{v8l}
    s_lshl_b32 s26, s{sW}, 1
    s_add_u32 s26, s26, s40
    s_mul_i32 s26, s26, 24576
    s_add_u32 s26, s26, {H}
    s_add_u32 s27, s26, 24576
    v_and_b32 v7, 15, v0
    v_lshrrev_b32 v30, 4, v0
    v_lshlrev_b32 v30, 3, v30
    v_mul_u32_u24 v{vRS}, 1280, v7
    v_add_u32 v{vRS}, v{vRS}, v30
    s_mul_i32 s28, s{sCL}, 81920
    s_mul_i32 s29, s{sW}, 20480
    s_add_u32 s28, s28, s29
    s_mul_i32 s29, s{sJ}, 160
    s_add_u32 s28, s28, s29
    s_add_u32 s31, s28, {X2}
    s_add_u32 s28, s28, {X1}
    s_lshr_b32 s32, s{sW}, 1
    s_lshl_b32 s32, s32, 5
    s_and_b32 s33, s{sW}, 1
    s_lshl_b32 s33, s33, 10
    s_add_u32 s32, s32, s33
    s_add_u32 s32, s32, s{sSIG}
    s_mul_i32 s32, s32, 1280
    s_add_u32 s32, s32, s29
    s_cmp_eq_u32 s{sMODE}, 0
    s_cselect_b32 s31, s31, s32
    s_mov_b32 s32, 81920
    s_cselect_b32 s32, 1280, s32
    v_mul_lo_u32 v{vOS}, v7, s32
    v_add_u32 v{vOS}, v{vOS}, v30
    s_lshl_b32 s33, s{sW}, 11""")
    sync(k, vm, 1, 32, between=lambda: w2load(12))
    stamp(k, 'sync2', stamps)
    vm.q = ["w2"]*12
    def hload(mu, ks):
        pi, kp = divmod(ks, 6); r = HR + 48*(mu & 1) + 4*ks
        if kp < 4: vm.op(f"buffer_load_dwordx4 a[{r}:{r+3}], v3, {WS}, s{26+pi} offen offset:{1024*kp}{SC}", ("h", mu, ks))
        else:
            for x in range(2):
                vm.op(f"buffer_load_dwordx2 a[{r+2*x}:{r+2*x+1}], v{vH8}, {WS}, s{26+pi} offen offset:{512*(2*(kp-4)+x)}{SC}", ("h", mu, ks))
        if ks == 11: k("s_add_u32 s26, s26, 6144\ns_add_u32 s27, s27, 6144")
    for mu in range(2):
        for ks in range(12): hload(mu, ks)
    for de in range(5): vm.op(f"buffer_load_dwordx2 v[{RS2+2*de}:{RS2+2*de+1}], v{vRS}, {WS}, s28 offen offset:{32*de}{SC}", "rs2")
    for ka in range(2): vm.op(f"buffer_load_dwordx4 v[{S1C+4*ka}:{S1C+4*ka+3}], v3, {TS}, s33 offen offset:{T_S1 + 1024*ka}", "s1c")
    def pw_addr(mu):
        k(f"s_sub_u32 s34, s{sW}, {mu+1}\ns_and_b32 s34, s34, 3\ns_mul_i32 s34, s34, 5120\ns_add_u32 s34, s34, {20480*mu}\nv_add_u32 v{vPW}, s34, v3")
    for mu in range(4):
        for ks in range(12):
            vm.wait(("h", mu, ks))
            if ks == 0: stamp(k, f'g2w{mu}', stamps)
            r = HR + 48*(mu & 1) + 4*ks
            for de in range(5):
                d = GA + 20*mu + 4*de
                c = "0" if ks == 0 else f"a[{d}:{d+3}]"
                k(f"v_mfma_f32_16x16x32_bf16 a[{d}:{d+3}], {w2reg(5*ks + de)}, a[{r}:{r+3}], {c}")
                if de == 1 and mu >= 1 and ks == 0: pw_addr(mu - 1)
                if de == 2 and mu >= 1 and 2 <= ks < 7:
                    dd = GA + 20*(mu - 1) + 4*(ks - 2)
                    k(f"ds_write_b128 v{vPW}, a[{dd}:{dd+3}] offset:{1024*(ks - 2)}")
            if mu < 2: hload(mu + 2, ks)
    pw_addr(3)
    for de in range(5):
        dd = GA + 60 + 4*de
        k(f"ds_write_b128 v{vPW}, a[{dd}:{dd+3}] offset:{1024*de}")
    stamp(k, 'g2', stamps)
    OWN, PR = 64, 84
    ls = [k.label("own") for _ in range(5)]
    for mu in range(4):
        k.put(ls[mu])
        if mu < 3: k(f"s_cmp_lg_u32 s{sW}, {mu}\ns_cbranch_scc1 {ls[mu+1]}")
        for x in range(20): k(f"v_accvgpr_read_b32 v{OWN+x}, a{GA+20*mu+x}")
        if mu < 3: k(f"s_branch {ls[4]}")
    k.put(ls[4])
    k(f"s_mul_i32 s34, s{sW}, 20480\nv_add_u32 v{vPW}, s34, v3")
    vm.wait("rs2", "s1c")
    k("s_waitcnt lgkmcnt(0)\ns_barrier")
    for sl in range(3):
        for de in range(5):
            r = PR + 20*sl + 4*de
            k(f"ds_read_b128 v[{r}:{r+3}], v{vPW} offset:{5120*sl + 1024*de}")
    TU = 144
    for x in range(10): k(f"v_lshlrev_b32 v{TU+2*x}, 16, v{RS2+x}\nv_and_b32 v{TU+2*x+1}, 0xffff0000, v{RS2+x}")
    for x in range(10): k(f"v_pk_add_f32 v[{OWN+2*x}:{OWN+2*x+1}], v[{OWN+2*x}:{OWN+2*x+1}], v[{TU+2*x}:{TU+2*x+1}]")
    for sl in range(3):
        for de in range(5):
            k(f"s_waitcnt lgkmcnt({14 - 5*sl - de})")
            for x in range(2):
                o, r = OWN + 4*de + 2*x, PR + 20*sl + 4*de + 2*x
                k(f"v_pk_add_f32 v[{o}:{o+1}], v[{o}:{o+1}], v[{r}:{r+1}]")
    for x in range(10): k(f"v_cvt_pk_bf16_f32 v{RS2+x}, v{OWN+2*x}, v{OWN+2*x+1}")
    for de in range(5): vm.op(f"buffer_store_dwordx2 v[{RS2+2*de}:{RS2+2*de+1}], v{vOS}, {OS}, s31 offen offset:{32*de}", "ost")
    stamp(k, 'red', stamps)
    fin = k.label("fin")
    k(f"s_cmp_eq_u32 s{sMODE}, 1\ns_cbranch_scc1 {fin}")
    def redg(a, t):
        k(f"v_mov_b32 v{t}, v{a}\nv_permlane16_swap_b32 v{t}, v{a}\nv_add_f32 v{a}, v{a}, v{t}\nv_mov_b32 v{t}, v{a}\nv_permlane32_swap_b32 v{t}, v{a}\nv_add_f32 v{a}, v{a}, v{t}")
    SA = 30
    k(f"v_pk_add_f32 v[{SA}:{SA+1}], v[{OWN}:{OWN+1}], v[{OWN+2}:{OWN+3}]")
    for x in range(2, 10): k(f"v_pk_add_f32 v[{SA}:{SA+1}], v[{SA}:{SA+1}], v[{OWN+2*x}:{OWN+2*x+1}]")
    k(f"v_add_f32 v{SA}, v{SA}, v{SA+1}")
    redg(SA, SA + 1)
    k(f"v_mul_f32 v{SA+2}, 0x3c4ccccd, v{SA}")
    for x in range(10): k(f"v_pk_add_f32 v[{TU+2*x}:{TU+2*x+1}], v[{OWN+2*x}:{OWN+2*x+1}], v[{SA+2}:{SA+3}] op_sel_hi:[1,0] neg_lo:[0,1] neg_hi:[0,1]")
    k(f"v_pk_mul_f32 v[{SA+4}:{SA+5}], v[{TU}:{TU+1}], v[{TU}:{TU+1}]")
    for x in range(1, 10): k(f"v_pk_fma_f32 v[{SA+4}:{SA+5}], v[{TU+2*x}:{TU+2*x+1}], v[{TU+2*x}:{TU+2*x+1}], v[{SA+4}:{SA+5}]")
    k(f"v_add_f32 v{SA+4}, v{SA+4}, v{SA+5}")
    redg(SA + 4, SA + 5)
    k(f"""v_mov_b32 v{SA+1}, v{SA+4}
    v_lshlrev_b32 v7, 3, v7
    s_lshl_b32 s34, s{sCL}, 12
    s_lshl_b32 s35, s{sW}, 7
    s_add_u32 s34, s34, s35
    s_add_u32 s34, s34, {ST}
    s_lshl_b32 s35, s{sJ}, 9
    s_add_u32 s35, s35, s34
    s_mov_b64 exec, 0xffff
    buffer_store_dwordx2 v[{SA}:{SA+1}], v7, {WS}, s35 offen sc1
    s_mov_b64 exec, -1
    v_lshrrev_b32 v{SA+2}, 4, v0
    v_lshl_add_u32 v7, v{SA+2}, 10, v7""")
    body, body4 = s1_stage(k, vm, LX, sW, S1C, [0, 1], True, U1, 170)
    k(f"""v_and_b32 v{SA+3}, 15, v0
    v_mul_u32_u24 v{SA+3}, 160, v{SA+3}
    v_lshl_add_u32 v{SA+3}, v{SA+2}, 3, v{SA+3}
    s_mul_i32 s35, s{sW}, 2560
    s_add_u32 s35, s35, {LX}
    v_add_u32 v{SA+3}, s35, v{SA+3}
    s_mov_b32 s57, 0""")
    lp, ok = k.label("sp"), k.label("sok")
    P = 36
    k.put(lp)
    k(f"""buffer_load_dwordx2 v[{P}:{P+1}], v7, {WS}, s34 offen sc1
    buffer_load_dwordx2 v[{P+2}:{P+3}], v7, {WS}, s34 offen offset:512 sc1
    s_add_u32 s57, s57, 1
    s_cmp_gt_u32 s57, 0x80000
    s_cbranch_scc1 {ok}
    s_waitcnt vmcnt(0)
    v_and_b32 v{P+4}, v{P}, v{P+1}
    v_and_b32 v{P+5}, v{P+2}, v{P+3}
    v_max_u32 v{P+4}, v{P+4}, v{P+5}
    v_cmp_eq_u32 vcc, -1, v{P+4}
    s_cbranch_vccnz {lp}""")
    k.put(ok)
    vm.drain()
    stamp(k, 'stats', stamps)
    k(f"v_add_f32 v{SA}, v{P}, v{P+2}")
    redg(SA, SA + 1)
    k(f"""v_mul_f32 v{SA}, 0x3acccccd, v{SA}
    v_fma_f32 v{P}, v{P}, s45, -v{SA}
    v_fma_f32 v{P+2}, v{P+2}, s45, -v{SA}
    v_mul_f32 v{P}, v{P}, v{P}
    v_fmac_f32 v{P}, v{P+2}, v{P+2}
    v_add_f32 v{P+1}, v{P+1}, v{P+3}
    v_fmac_f32 v{P+1}, 0x42a00000, v{P}""".replace("v_mul_f32 v30, 0x3acccccd, v30", "s_mov_b32 s45, 0x3c4ccccd\n    v_mul_f32 v30, 0x3acccccd, v30"))
    redg(P + 1, P)
    k(f"""v_mov_b32 v{SA+1}, 0x3727c5ac
    v_fmac_f32 v{SA+1}, 0x3acccccd, v{P+1}
    v_rsq_f32 v{SA+1}, v{SA+1}
    s_nop 0
    v_mul_f32 v{SA}, v{SA}, v{SA+1}""")
    for x in range(10):
        o = OWN + 2*x
        k(f"v_pk_fma_f32 v[{o}:{o+1}], v[{o}:{o+1}], v[{SA}:{SA+1}], v[{SA}:{SA+1}] op_sel:[0,1,0] op_sel_hi:[1,1,0] neg_lo:[0,0,1] neg_hi:[0,0,1]")
    for x in range(10): k(f"v_cvt_pk_f16_f32 v{TU+x}, v{OWN+2*x}, v{OWN+2*x+1}")
    for de in range(5): k(f"ds_write_b64 v{SA+3}, v[{TU+2*de}:{TU+2*de+1}] offset:{32*de}")
    k("s_waitcnt lgkmcnt(0)\ns_barrier")
    body(); body4()
    stamp(k, 's1', stamps)
    k.put(fin)
    stamp_flush(k, 1, stamps, sadd=sMODE)
    if 'dbg2' in OPT:
        e = k.label("nd2")
        nm = k.stn
        k(f'''s_cmp_lg_u32 s2, 0
        s_cbranch_scc1 {e}
        s_cmp_lg_u32 s{sW}, 0
        s_cbranch_scc1 {e}
        s_cmp_lg_u32 s{sMODE}, 1
        s_cbranch_scc1 {e}
        s_load_dwordx2 s[52:53], s[0:1], 72
        s_waitcnt vmcnt(0) lgkmcnt(0)
        s_mov_b32 s54, 256
        s_mov_b32 s55, 0x20000
        s_mov_b32 s56, {STAMP}
        v_mov_b32 v1, 0
        buffer_load_dword v3, v1, {WS}, s56 offen sc1''')
        sel = [(0, 3)] + [(1, nm.index(x)) for x in "start quads hb_ln xn0 g1 sync2 g2 s1".split()] + [(2, nm.index(x)) for x in "start quads hb_ln xn0 g1 g2 red".split()]
        for i, (sl, ix) in enumerate(sel):
            k(f"s_mov_b32 s56, {STAMP + sl*0x40000}\nbuffer_load_dword v{8+i}, v1, {WS}, s56 offen offset:{4*ix} sc1")
        k("s_waitcnt vmcnt(0)")
        for i in range(16): k(f"v_sub_u32 v{8+i}, v{8+i}, v3\nbuffer_store_dword v{8+i}, v1, s[52:55], 0 offen offset:{4*i}")
        k.put(e)
    k.put(done); k("s_endpgm")
    return k, kc

if __name__ == "__main__":
    path = sys.argv[1]; opts = sys.argv[2].split(",") if len(sys.argv) > 2 else []
    st = "stamp" in opts; OPT.update(opts)
    stop = "p2" if "p2" in opts else "g1" if "g1" in opts else None
    kb, kc = gen_kb(st, stop)
    L = [gen_ka(st, 'dbg' in opts), kb] + ([kc] if "nokc" not in opts and not stop else [])
    finish(L, path)
```

```python
import sys
from asmlib import *
import asmlib, hazard, tables
S, D, F = 2048, 640, 1536
U0, XN, X1, X2, H, W1F, W2F, ST, FL, STAMP, U1 = 0, 0x280000, 0x500000, 0x780000, 0xA00000, 0x1000000, 0x11E0000, 0x13C0000, 0x13E0000, 0x1400000, 0x1500000
TOFF, TBLOB = tables.blob()
T_S1, T_HA, T_HB, T_TW = TOFF
OOB = 0x20000000
WS, XS, OS, TS = "s[4:7]", "s[8:11]", "s[12:15]", "s[16:19]"
sW, sJ, sCL, sSIG = 20, 21, 22, 23

class VM:
    def __init__(self, k): self.k, self.q = k, []
    def op(self, s, tag=None): self.k(s); self.q.append(tag); assert len(self.q) <= 63 or True
    def wait(self, *tags):
        ii = [i for i, t in enumerate(self.q) if t in tags]
        if not ii: return
        idx = max(ii)
        n = len(self.q) - 1 - idx
        assert n <= 63
        self.k(f"s_waitcnt vmcnt({n})"); self.q = self.q[idx + 1:]
    def drain(self): self.k("s_waitcnt vmcnt(0)"); self.q = []

def ids(k, done):
    k(f"s_cmp_ge_u32 s2, 256\ns_cbranch_scc1 {done}")
def ids2(k):
    k(f"""s_lshr_b32 s3, s2, 3
    s_and_b32 s{sJ}, s3, 7
    s_lshr_b32 s3, s2, 6
    s_and_b32 s24, s2, 7
    s_lshl_b32 s{sCL}, s24, 2
    s_add_u32 s{sCL}, s{sCL}, s3
    s_lshr_b32 s25, s{sCL}, 1
    s_sub_u32 s26, 32, s25
    s_cmp_eq_u32 s25, 0
    s_cselect_b32 s26, 16, s26
    s_bitcmp1_b32 s3, 0
    s_cselect_b32 s{sSIG}, s26, s25
    v_lshrrev_b32 v1, 6, v0
    v_and_b32 v0, 63, v0
    v_readfirstlane_b32 s{sW}, v1""")
def tblsrd(k, total_from="code_start"):
    l = k.label("pc")
    k("s_getpc_b64 s[16:17]"); k.put(l)
    k(f"s_add_u32 s16, s16, tbl-{l}\ns_addc_u32 s17, s17, 0\ns_mov_b32 s18, {len(TBLOB)}\ns_mov_b32 s19, 0x20000")

def stamp(k, n, on):
    if not on: return
    if not hasattr(k, "stn"): k.stn = []
    i = len(k.stn); k.stn.append(str(n)); assert i < 20
    k(f"s_memrealtime s[{60+2*i}:{61+2*i}]")
def stamp_flush(k, slot, on, sadd=None):
    if not on: return
    k("s_waitcnt lgkmcnt(0)")
    k(f"s_lshl_b32 s58, s2, 3\ns_add_u32 s58, s58, s{sW}\ns_lshl_b32 s58, s58, 7\ns_add_u32 s58, s58, {STAMP + slot*0x40000}\nv_mov_b32 v1, 0")
    if sadd: k(f"s_mul_i32 s56, s{sadd}, 0x40000\ns_add_u32 s58, s58, s56")
    for i in range(len(k.stn)):
        k(f"v_mov_b32 v2, s{60+2*i}\nbuffer_store_dword v2, v1, {WS}, s58 offen offset:{4*i}")
    k("; STAMPNAMES " + k.name + " " + " ".join(k.stn))

def s1_stage(k, vm, xl, nt_s, cst, tiles_pairs, with4, ubase, vt, gq_s=None):
    a0, a4, vo, vo4, op, acc = vt, vt + 1, vt + 2, vt + 3, vt + 4, vt + 20
    k(f"""v_lshrrev_b32 v{a0}, 2, v0
    v_mul_u32_u24 v{a0}, 160, v{a0}
    v_and_b32 v{a4}, 1, v0
    v_lshl_add_u32 v{a4}, v{a4}, 3, v{a0}
    v_bfe_u32 v{vo}, v0, 1, 1
    v_mul_u32_u24 v{vo}, 80, v{vo}
    v_add3_u32 v{a4}, v{a4}, v{vo}, 64
    v_and_b32 v{vo}, 3, v0
    v_lshl_add_u32 v{a0}, v{vo}, 3, v{a0}
    v_bfe_u32 v{vo}, v0, 1, 3
    v_mul_u32_u24 v{vo}, 81920, v{vo}
    v_and_b32 v{vo4}, 1, v0
    v_lshl_add_u32 v{vo}, v{vo4}, 7, v{vo}
    v_bfe_u32 v{op}, v0, 4, 1
    v_lshl_add_u32 v{vo4}, v{op}, 13, v{vo}
    v_lshrrev_b32 v{op}, 5, v0
    v_lshl_add_u32 v{vo4}, v{op}, 3, v{vo4}
    v_lshrrev_b32 v{op}, 4, v0
    v_lshl_add_u32 v{vo}, v{op}, 13, v{vo}
    s_mul_i32 s30, s{nt_s}, 655360
    s_lshl_b32 s31, s{sSIG}, 8
    s_add_u32 s30, s30, s31
    s_lshl_b32 s31, s{sJ}, 4
    s_add_u32 s30, s30, s31
    s_add_u32 s30, s30, {ubase}
    s_add_u32 s32, s30, 65536""")
    if xl >= 49152:
        k(f"v_add_u32 v{a0}, {xl}, v{a0}\nv_add_u32 v{a4}, {xl}, v{a4}"); xl = 0
    if gq_s is not None:
        k(f"s_lshl_b32 s31, s{gq_s}, 5\nv_add_u32 v{a0}, s31, v{a0}\ns_lshl_b32 s31, s{gq_s}, 15\ns_add_u32 s30, s30, s31")
    def body():
        for gq in tiles_pairs:
            for bit in range(2):
                for ka in range(2):
                    for h in range(2):
                        r = op + 8*bit + 4*ka + 2*h
                        k(f"ds_read_b64_tr_b16 v[{r}:{r+1}], v{a0} offset:{xl + (32*ka + 16*h)*160 + 80*bit + 32*gq}")
            for bit in range(2):
                for ka in range(2):
                    r = op + 8*bit + 4*ka
                    k(f"s_waitcnt lgkmcnt({6 - 4*bit - 2*ka})")
                    c = "0" if ka == 0 else f"v[{acc+4*bit}:{acc+4*bit+3}]"
                    k(f"v_mfma_f32_16x16x32_f16 v[{acc+4*bit}:{acc+4*bit+3}], v[{r}:{r+3}], v[{cst+4*ka}:{cst+4*ka+3}], {c}")
            for x in range(4):
                k(f"v_cvt_pk_f16_f32 v{acc+8+x}, v{acc+2*x}, v{acc+2*x+1}")
            if gq: k(f"s_add_u32 s33, s30, {gq*32768}")
            vm.op(f"buffer_store_dwordx4 v[{acc+8}:{acc+11}], v{vo}, {WS}, s{33 if gq else 30} offen")
    def body4():
        for ka in range(2):
            for h in range(2):
                r = op + 4*ka + 2*h
                k(f"ds_read_b64_tr_b16 v[{r}:{r+1}], v{a4} offset:{xl + (32*ka + 16*h)*160}")
        for ka in range(2):
            k(f"s_waitcnt lgkmcnt({2 - 2*ka})")
            c = "0" if ka == 0 else f"v[{acc}:{acc+3}]"
            k(f"v_mfma_f32_16x16x32_f16 v[{acc}:{acc+3}], v[{op+4*ka}:{op+4*ka+3}], v[{cst+4*ka}:{cst+4*ka+3}], {c}")
        k(f"v_cvt_pk_f16_f32 v{acc+12}, v{acc}, v{acc+1}\nv_cvt_pk_f16_f32 v{acc+13}, v{acc+2}, v{acc+3}")
        vm.op(f"buffer_store_dwordx2 v[{acc+12}:{acc+13}], v{vo4}, {WS}, s32 offen")
    return body, body4

def dbgstamp(k, idx_base):
    e = k.label('dbg')
    k(f'''s_cmp_ge_u32 s2, 8
    s_cbranch_scc1 {e}
    s_load_dwordx2 s[52:53], s[0:1], 72
    s_waitcnt vmcnt(0)
    s_memrealtime s[54:55]
    s_waitcnt lgkmcnt(0)
    s_sub_u32 s54, s54, s60
    s_mov_b32 s56, s52
    s_mov_b32 s57, s53
    s_mov_b32 s58, 256
    s_mov_b32 s59, 0x20000
    s_lshl_b32 s55, s2, 2
    v_mov_b32 v1, 0
    v_mov_b32 v2, s54
    buffer_store_dword v2, v1, s[56:59], s55 offen offset:{4*idx_base}''')
    k.put(e)
def prepstamp(k, on):
    if not on: return
    k(f'''s_waitcnt vmcnt(0)
    s_memrealtime s[64:65]
    s_waitcnt lgkmcnt(0)
    s_lshl_b32 s58, s2, 3
    s_add_u32 s58, s58, s27
    s_lshl_b32 s58, s58, 7
    s_add_u32 s58, s58, {STAMP + 3*0x40000}
    v_mov_b32 v1, 0''')
    for i in range(3): k(f"v_mov_b32 v2, s{60+2*i}\nbuffer_store_dword v2, v1, {WS}, s58 offen offset:{4*i}")
def gen_ka(stamps=False, dbg=False):
    k = K("ka_kernel", 256, 640, lds=10240 + 2*12288, vgpr=104)
    done = k.label("done"); prep = k.label("prep")
    ids(k, done)
    k("s_load_dwordx2 s[8:9], s[0:1], 0\ns_load_dwordx4 s[36:39], s[0:1], 48\ns_load_dwordx2 s[4:5], s[0:1], 80")
    stamp(k, 0, stamps)
    if dbg: k("s_memrealtime s[60:61]")
    tblsrd(k); ids2(k)
    k(f"s_mov_b32 s10, {S*D*2}\ns_mov_b32 s11, 0x20000\ns_mov_b32 s6, 0x10000000\ns_mov_b32 s7, 0x20000")
    k(f"s_cmp_ge_u32 s{sW}, 8\ns_cbranch_scc1 {prep}")
    vm = VM(k)
    k(f"""v_lshrrev_b32 v2, 4, v0
    v_mul_u32_u24 v2, 81920, v2
    v_and_b32 v3, 15, v0
    v_lshl_add_u32 v2, v3, 4, v2
    v_lshlrev_b32 v4, 4, v0
    s_lshr_b32 s27, s{sW}, 2
    s_and_b32 s28, s{sW}, 3
    s_lshl_b32 s24, s27, 5
    s_lshl_b32 s25, s28, 9
    s_add_u32 s24, s24, s25
    s_add_u32 s24, s24, s{sSIG}
    s_mul_i32 s24, s24, 1280
    s_add_u32 s25, s24, {256*1280}
    s_mul_i32 s26, s{sJ}, 160
    s_add_u32 s34, s24, s26
    s_add_u32 s35, s25, s26
    s_lshl_b32 s29, s28, 11
    s_waitcnt lgkmcnt(0)""")
    X = [8, 28]; SL = [48, 52]; CST = 56
    for hh in range(2):
        for n in range(5):
            vm.op(f"buffer_load_dwordx4 v[{X[hh]+4*n}:{X[hh]+4*n+3}], v2, {XS}, s{24+hh} offen offset:{256*n}", ("x", hh, n))
    for hh in range(2):
        vm.op(f"buffer_load_dwordx4 v[{SL[hh]}:{SL[hh]+3}], v2, {XS}, s{34+hh} offen", "sl")
    for ka in range(2):
        vm.op(f"buffer_load_dwordx4 v[{CST+4*ka}:{CST+4*ka+3}], v4, {TS}, s29 offen offset:{T_S1 + 1024*ka}", "cst")
    body, body4 = s1_stage(k, vm, 0, 28, CST, [0], 'dyn', U0, 64, gq_s=27)
    k(f"""s_mul_i32 s26, s{sW}, 1280
    v_lshrrev_b32 v5, 4, v0
    v_mul_u32_u24 v5, 160, v5
    v_lshl_add_u32 v5, v3, 4, v5
    v_add_u32 v5, s26, v5
    v_mov_b32 v6, 0x3f803f80""")
    A = 84
    for r in range(4): k(f"v_mov_b32 v{A+r}, 0")
    for hh in range(2):
        for n in range(5):
            vm.wait(("x", hh, n))
            for d in range(4):
                r = X[hh] + 4*n + d
                k(f"v_dot2c_f32_bf16 v{A+2*hh}, v{r}, v6\nv_dot2c_f32_bf16 v{A+2*hh+1}, v{r}, v{r}")
    stamp(k, 1, stamps)
    for m in ("quad_perm:[1,0,3,2]", "quad_perm:[2,3,0,1]", "row_half_mirror", "row_mirror"):
        for r in range(4): k(f"v_add_f32_dpp v{A+r}, v{A+r}, v{A+r} {m} row_mask:0xf bank_mask:0xf")
    for hh in range(2):
        m, q = A + 2*hh, A + 2*hh + 1
        k(f"""v_mul_f32 v{m}, 0x3acccccd, v{m}
        v_mul_f32 v{q}, 0x3acccccd, v{q}
        v_fma_f32 v{q}, -v{m}, v{m}, v{q}
        v_max_f32 v{q}, 0, v{q}
        v_add_f32 v{q}, 0x3727c5ac, v{q}
        v_rsq_f32 v{q}, v{q}""")
    for hh in range(2):
        m, q = A + 2*hh, A + 2*hh + 1
        k(f"v_mul_f32 v{m}, v{m}, v{q}")
    vm.wait("sl")
    for hh in range(2):
        m, q = A + 2*hh, A + 2*hh + 1
        t = 8 + 8*hh
        for d in range(4):
            k(f"v_lshlrev_b32 v{t+2*d}, 16, v{SL[hh]+d}\nv_and_b32 v{t+2*d+1}, 0xffff0000, v{SL[hh]+d}")
        for d in range(4):
            k(f"v_pk_fma_f32 v[{t+2*d}:{t+2*d+1}], v[{t+2*d}:{t+2*d+1}], v[{m}:{q}], v[{m}:{q}] op_sel:[0,1,0] op_sel_hi:[1,1,0] neg_lo:[0,0,1] neg_hi:[0,0,1]")
        for d in range(4):
            k(f"v_cvt_pk_f16_f32 v{SL[hh]+d}, v{t+2*d}, v{t+2*d+1}")
    k("v_cmp_gt_u32 vcc, 10, v3\ns_and_saveexec_b64 s[40:41], vcc")
    for hh in range(2): k(f"ds_write_b128 v5, v[{SL[hh]}:{SL[hh]+3}] offset:{640*hh}")
    k("s_mov_b64 exec, s[40:41]")
    vm.wait("cst")
    k("s_waitcnt lgkmcnt(0)\ns_barrier")
    stamp(k, 2, stamps)
    body()
    sk = k.label("sk"); k(f"s_cmp_eq_u32 s27, 0\ns_cbranch_scc1 {sk}")
    body4(); k.put(sk)
    stamp(k, 3, stamps); stamp_flush(k, 0, stamps)
    if dbg:
        e2 = k.label("nd"); k(f"s_cmp_lg_u32 s{sW}, 0\ns_cbranch_scc1 {e2}"); dbgstamp(k, 0); k.put(e2)
    k("s_endpgm")
    k.put(prep)
    w2p, nou, fin = k.label("w2p"), k.label("nou"), k.label("fin")
    k(f"""s_sub_u32 s27, s{sW}, 8
    s_lshl_b32 s24, s27, 8
    s_add_u32 s24, s24, s2
    s_mul_i32 s40, s27, 12288
    s_add_u32 s40, s40, 10240
    v_lshrrev_b32 v2, 3, v0
    v_bfe_u32 v3, v0, 4, 2
    v_lshlrev_b32 v3, 1, v3
    v_and_b32 v4, 7, v0
    v_xor_b32 v3, v3, v4
    v_lshlrev_b32 v3, 4, v3
    v_lshlrev_b32 v9, 4, v0
    v_and_b32 v10, 3, v0
    v_lshlrev_b32 v10, 3, v10
    v_add_u32 v10, s40, v10""")
    l = k.label("pc2")
    k("s_getpc_b64 s[44:45]"); k.put(l)
    k(f"""s_sub_u32 s44, s44, {l}-code_start
    s_subb_u32 s45, s45, 0
    s_mov_b32 s46, code_end-code_start
    s_mov_b32 s47, 0x20000
    s_lshr_b32 s25, s2, 3
    s_lshl_b32 s26, s27, 5
    s_add_u32 s25, s25, s26
    s_lshl_b32 s25, s25, 10
    buffer_load_dwordx4 v[60:63], v9, s[44:47], s25 offen
    s_waitcnt lgkmcnt(0)
    s_mov_b32 s48, s38
    s_mov_b32 s49, s39
    s_mov_b32 s38, {D*F*2}
    s_mov_b32 s39, 0x20000
    s_mov_b32 s50, {D*F*2}
    s_mov_b32 s51, 0x20000
    s_cmp_ge_u32 s24, 400
    s_cbranch_scc1 {nou}
    s_cmp_ge_u32 s24, 240
    s_cbranch_scc1 {w2p}""")
    def init_words():
        z = k.label("z"); e = k.label("e")
        k(f"""s_lshl_b32 s28, s{sCL}, 3
        s_add_u32 s28, s28, s{sJ}
        s_cmp_eq_u32 s27, 0
        s_cbranch_scc0 {z}
        s_lshl_b32 s28, s28, 9
        s_add_u32 s28, s28, {ST}
        v_mov_b32 v12, -1
        v_mov_b32 v13, -1
        v_lshlrev_b32 v11, 3, v0
        buffer_store_dwordx2 v[12:13], v11, {WS}, s28 offen
        s_branch {e}""")
        k.put(z)
        k(f"""s_lshl_b32 s28, s{sCL}, 7
        s_lshl_b32 s29, s{sJ}, 4
        s_add_u32 s28, s28, s29
        s_add_u32 s28, s28, {FL}
        v_mov_b32 v12, 0
        v_lshrrev_b32 v11, 2, v0
        v_lshlrev_b32 v11, 12, v11
        v_and_b32 v13, 3, v0
        v_lshl_add_u32 v11, v13, 2, v11
        s_mov_b64 exec, 0xffff
        buffer_store_dword v12, v11, {WS}, s28 offen
        s_mov_b64 exec, -1""")
        k.put(e)
    k(f"""s_mul_i32 s25, s24, 2731
    s_lshr_b32 s25, s25, 16
    s_mul_i32 s26, s25, 24
    s_sub_u32 s26, s24, s26
    s_mul_i32 s28, s25, {64*3072}
    s_lshl_b32 s29, s26, 7
    s_add_u32 s28, s28, s29
    v_mul_u32_u24 v2, 3072, v2
    v_add_u32 v2, v2, v3
    s_mov_b32 m0, s40""")
    for i in range(8):
        k(f"buffer_load_dwordx4 v2, s[36:39], s28 offen lds")
        if i < 7: k(f"s_add_u32 s28, s28, {8*3072}\ns_add_u32 m0, m0, 1024")
    init_words()
    k("s_barrier")
    k(f"""v_bfe_u32 v5, v0, 2, 2
    v_lshrrev_b32 v6, 4, v0
    v_lshl_add_u32 v6, v6, 3, v5
    v_lshl_add_u32 v10, v6, 7, v10
    v_lshrrev_b32 v5, 1, v5
    v_lshl_add_u32 v10, v5, 5, v10
    v_xor_b32 v11, 32, v10
    v_xor_b32 v12, 64, v10
    v_xor_b32 v13, 96, v10
    s_lshl_b32 s26, s26, 2
    s_mul_i32 s25, s25, 6
    s_waitcnt vmcnt(0)""")
    if stamps: k("s_memrealtime s[62:63]")
    for ph in range(4):
        for ka in range(2):
            for h in range(2):
                r = 16 + 8*ph + 4*ka + 2*h
                k(f"ds_read_b64_tr_b16 v[{r}:{r+1}], v{10 + (ph ^ (2*h))} offset:{512*h + 4096*ka}")
    for ph in range(4):
        k(f"""s_add_u32 s28, s26, {ph}
        s_mul_i32 s29, s28, 21846
        s_lshr_b32 s29, s29, 16
        s_mul_i32 s30, s29, 57
        s_add_u32 s28, s28, s30
        s_add_u32 s28, s28, s25
        s_lshl_b32 s28, s28, 10
        s_add_u32 s28, s28, {W1F}
        s_waitcnt lgkmcnt({12 - 4*ph})""")
        for ka in range(2):
            r = 16 + 8*ph + 4*ka
            k(f"buffer_store_dwordx4 v[{r}:{r+3}], v9, {WS}, s28 offen offset:{3072*ka}")
    prepstamp(k, stamps)
    k("s_endpgm")
    k.put(w2p)
    k(f"""s_sub_u32 s24, s24, 240
    s_mul_i32 s25, s24, 6554
    s_lshr_b32 s25, s25, 16
    s_mul_i32 s26, s25, 10
    s_sub_u32 s26, s24, s26
    s_mul_i32 s28, s25, {96*1280}
    s_lshl_b32 s29, s26, 7
    s_add_u32 s28, s28, s29
    v_mul_u32_u24 v2, 1280, v2
    v_add_u32 v2, v2, v3
    s_mov_b32 m0, s40""")
    for i in range(12):
        k(f"buffer_load_dwordx4 v2, s[48:51], s28 offen lds")
        if i < 11: k(f"s_add_u32 s28, s28, {8*1280}\ns_add_u32 m0, m0, 1024")
    init_words()
    k("s_barrier")
    k(f"""v_lshrrev_b32 v6, 2, v0
    v_lshl_add_u32 v10, v6, 7, v10
    v_bfe_u32 v5, v0, 3, 2
    v_lshl_add_u32 v10, v5, 5, v10
    v_xor_b32 v11, 32, v10
    v_xor_b32 v12, 64, v10
    v_xor_b32 v13, 96, v10
    s_lshl_b32 s26, s26, 2
    s_lshr_b32 s30, s25, 1
    s_mul_i32 s30, s30, 30
    s_and_b32 s31, s25, 1
    s_mul_i32 s32, s31, 10
    s_add_u32 s32, s32, s30
    s_mul_i32 s33, s31, 5
    s_add_u32 s33, s33, s30
    s_add_u32 s33, s33, 20
    s_waitcnt vmcnt(0)""")
    if stamps: k("s_memrealtime s[62:63]")
    RR = [(0, 16), (48, 64), (32, 80)]
    for ph in range(4):
        for st in range(3):
            for h in range(2):
                r = 16 + 12*ph + 4*st + 2*h
                k(f"ds_read_b64_tr_b16 v[{r}:{r+1}], v{10 + ph} offset:{RR[st][h]*128}")
        k(f"""s_add_u32 s28, s26, {ph}
        s_mul_i32 s29, s28, 13108
        s_lshr_b32 s29, s29, 16
        s_mul_i32 s29, s29, 235
        s_add_u32 s28, s28, s29
        s_add_u32 s29, s28, s33
        s_add_u32 s28, s28, s32
        s_lshl_b32 s28, s28, 10
        s_lshl_b32 s29, s29, 10
        s_add_u32 s28, s28, {W2F}
        s_add_u32 s29, s29, {W2F}
        s_add_u32 s34, s28, 5120
        s_waitcnt lgkmcnt(0)""")
        for st, sr in enumerate((28, 34, 29)):
            r = 16 + 12*ph + 4*st
            k(f"buffer_store_dwordx4 v[{r}:{r+3}], v9, {WS}, s{sr} offen")
    prepstamp(k, stamps)
    k("s_endpgm")
    k.put(nou)
    init_words()
    k("s_barrier")
    if stamps: k("s_memrealtime s[62:63]")
    prepstamp(k, stamps)
    k.put(done); k("s_endpgm")
    return k

def finish(L, path):
    seen = []
    for k in L:
        if k not in seen:
            seen.append(k); k.lines = hazard.fix(k.lines)
    o = build(L, path)
    o = o.replace(".text\n", ".text\n.p2align 8\ncode_start:\n", 1)
    o = o.replace('.section .rodata,"a"\n', ".p2align 8\n.type tbl,@object\ntbl:\n" + tables.emit(TBLOB) + "code_end:\n" + '.section .rodata,"a"\n', 1)
    open(path, "w").write(o)

if __name__ == "__main__":
    finish([gen_ka()], sys.argv[1])
```

```python
from fnet import *
import os
LV, LHB, LX = 98304, 118912, 81920
sMODE = 59
def poll(k, addr_s, nl, target, vt):
    lp, ok = k.label("poll"), k.label("ok")
    k(f"s_mov_b32 s57, 0")
    k.put(lp)
    k(f"""buffer_load_dword v{vt+1}, v{vt}, {WS}, s{addr_s} offen sc1
    s_add_u32 s57, s57, 1
    s_cmp_gt_u32 s57, 0x80000
    s_cbranch_scc1 {ok}
    s_waitcnt vmcnt(0)
    v_cmp_gt_u32 vcc, {target}, v{vt+1}
    s_cbranch_vccnz {lp}""")
    k.put(ok)
    k("s_waitcnt vmcnt(0)")
def sync(k, vm, kind, vt, between=None):
    vm.drain(); k("s_barrier")
    sk = k.label("nf")
    if between: between()
    k(f"""s_cmp_lg_u32 s{sW}, 0
    s_cbranch_scc1 {sk}
    s_lshl_b32 s24, s{sMODE}, 13
    s_lshl_b32 s25, s{sCL}, 7
    s_add_u32 s24, s24, s25
    s_add_u32 s24, s24, {FL + 4096*kind}
    s_lshl_b32 s25, s{sJ}, 4
    s_add_u32 s25, s25, s24
    v_mov_b32 v{vt}, 0
    v_mov_b32 v{vt+1}, 1
    s_mov_b64 exec, 1
    buffer_store_dword v{vt+1}, v{vt}, {WS}, s25 offen sc1
    s_mov_b64 exec, -1
    v_and_b32 v{vt}, 7, v0
    v_lshlrev_b32 v{vt}, 4, v{vt}""")
    poll(k, 24, 8, 1, vt)
    k.put(sk)
    k("s_barrier")

OPT = set()
def gen_kb(stamps=False, stop=None):
    SC = '' if 'nosc' in OPT else ' sc1'
    k = K("kb_kernel", 256, 256, lds=160*1024, vgpr=256, agpr=256)
    kc = K("kc_kernel", 256, 256, lds=160*1024, vgpr=256, agpr=256)
    kc(f"s_mov_b32 s{sMODE}, 1\ns_branch kbc_common")
    k(f"s_mov_b32 s{sMODE}, 0"); k.put("kbc_common")
    done = k.label("done")
    ids(k, done)
    k("s_load_dwordx2 s[8:9], s[0:1], 0\ns_load_dwordx2 s[12:13], s[0:1], 64\ns_load_dwordx2 s[4:5], s[0:1], 80")
    stamp(k, 'start', stamps)
    tblsrd(k); ids2(k)
    vm = VM(k)
    k(f"""s_mov_b32 s6, 0x10000000
    s_mov_b32 s7, 0x20000
    s_mov_b32 s11, 0x20000
    s_mov_b32 s15, 0x20000
    s_lshr_b32 s24, s{sJ}, 2
    s_sub_u32 s25, 32, s{sSIG}
    s_and_b32 s25, s25, 31
    s_cmp_eq_u32 s24, 0
    s_cselect_b32 s25, s{sSIG}, s25
    s_mul_i32 s25, s25, 81920
    s_mul_i32 s26, s{sW}, 3
    s_lshl_b32 s27, s{sW}, 1
    s_add_u32 s27, s27, 2
    s_cmp_lt_u32 s{sW}, 2
    s_cselect_b32 s26, s26, s27
    s_lshl_b32 s27, s26, 13
    s_add_u32 s25, s25, s27
    s_mul_i32 s27, s{sMODE}, {U1 - U0}
    s_add_u32 s25, s25, s27
    s_lshl_b32 s28, s26, 9
    s_mul_i32 s29, s{sW}, 24576
    v_lshrrev_b32 v1, 3, v0
    v_lshlrev_b32 v1, 7, v1
    v_bfe_u32 v2, v0, 4, 2
    v_lshlrev_b32 v2, 1, v2
    v_and_b32 v3, 7, v0
    v_xor_b32 v2, v2, v3
    v_lshl_add_u32 v1, v2, 4, v1
    v_lshlrev_b32 v3, 4, v0
    v_bfe_u32 v2, v0, 3, 1
    v_lshlrev_b32 v2, 2, v2
    v_lshrrev_b32 v4, 4, v0
    v_add_u32 v2, v2, v4
    v_lshlrev_b32 v2, 6, v2
    s_mov_b32 m0, s29
    s_waitcnt lgkmcnt(0)""")
    S2C, HAC, TW, RES, HBC, OP, DD, PK, TMP, HD, WO, TT = 16, 24, 32, 80, 92, 128, 160, 176, 184, 186, 202, 210
    def udma(i):
        for x in range(8):
            if x == 4: k("s_add_u32 s25, s25, 4096\ns_add_u32 m0, m0, 4096")
            vm.op(f"buffer_load_dwordx4 v1, {WS}, s25 offen offset:{1024*(x & 3)} lds", ("u", i))
        k("s_add_u32 s25, s25, 4096\ns_add_u32 m0, m0, 4096")
    def twl(i):
        o = T_TW + 512*i
        k(f"s_add_u32 s30, s28, {o}")
        for x in range(4):
            vm.op(f"buffer_load_dwordx4 v[{TW+16*i+4*x}:{TW+16*i+4*x+3}], v2, {TS}, s30 offen offset:{16*x}", ("tw", i))
    udma(0)
    k(f"s_mov_b32 s30, {T_HA}")
    for T in range(2): vm.op(f"buffer_load_dwordx4 v[{HAC+4*T}:{HAC+4*T+3}], v3, {TS}, s30 offen offset:{1024*T}", "ha")
    twl(0); udma(1); twl(1)
    k(f"s_cmp_lt_u32 s{sW}, 2\ns_cselect_b32 s25, s25, {OOB}")
    udma(2); twl(2)
    k(f"s_lshl_b32 s30, s{sW}, 11\ns_add_u32 m0, s30, {LHB}\ns_add_u32 s30, s30, {T_HB}")
    for x in range(2): vm.op(f"buffer_load_dwordx4 v3, {TS}, s30 offen offset:{1024*x} lds", "hb")
    k(f"s_mov_b32 m0, {LHB + 8192}\ns_mov_b32 s30, {T_HB + 8192}")
    vm.op(f"buffer_load_dwordx4 v3, {TS}, s30 offen lds", "hb")
    m0l, m1l = k.label("m0"), k.label("m1")
    k(f"""s_mul_i32 s33, s{sCL}, 81920
    s_lshl_b32 s34, s{sJ}, 2
    s_add_u32 s34, s34, s{sW}
    s_mul_i32 s34, s34, 2560
    s_add_u32 s33, s33, s34
    s_and_b32 s35, s{sJ}, 3
    s_lshl_b32 s35, s35, 9
    s_lshl_b32 s36, s24, 5
    s_add_u32 s35, s35, s36
    s_add_u32 s35, s35, s{sSIG}
    s_cmp_eq_u32 s{sMODE}, 0
    s_cbranch_scc0 {m1l}
    s_lshl_b32 s31, s{sW}, 7
    s_add_u32 s31, s31, s35
    s_mul_i32 s31, s31, 1280
    s_add_u32 s32, s31, 81920
    s_mov_b32 s10, {S*D*2}
    s_mov_b32 s12, s4
    s_mov_b32 s13, s5
    s_mov_b32 s14, 0x10000000
    s_branch {m0l}""")
    k.put(m1l)
    k(f"""s_add_u32 s31, s33, {X2}
    s_add_u32 s32, s31, 1280
    s_mov_b32 s8, s4
    s_mov_b32 s9, s5
    s_mov_b32 s10, 0x10000000
    s_mov_b32 s14, {S*D*2}""")
    k.put(m0l)
    k(f"""v_and_b32 v15, 15, v0
    v_lshlrev_b32 v11, 5, v15
    v_lshl_add_u32 v13, v4, 3, v11
    v_cmp_gt_u32 vcc, 8, v15
    v_mov_b32 v12, {OOB}
    v_lshrrev_b32 v14, 5, v0
    v_lshl_add_u32 v14, v14, 4, v11
    v_mov_b32 v11, v13
    v_cndmask_b32 v12, v12, v11, vcc
    v_bfe_u32 v13, v0, 4, 1
    v_mul_u32_u24 v13, 1280, v13
    v_add_u32 v13, v13, v14
    v_mov_b32 v14, {OOB}
    v_cndmask_b32 v14, v14, v13, vcc
    v_cndmask_b32 v212, 0, 1.0, vcc""")
    for R in range(2):
        for tp in range(3):
            r = RES + 6*R + 2*tp
            vm.op(f"buffer_load_dwordx2 v[{r}:{r+1}], v{12 if tp == 2 else 11}, {XS}, s{31+R} offen offset:{512*tp}", "res")
    k(f"""s_lshl_b32 s37, s{sJ}, 2
    s_add_u32 s37, s37, s{sW}
    s_mul_i32 s37, s37, 61440
    s_add_u32 s38, s37, {W2F}
    s_add_u32 s37, s37, {W1F}""")
    w1n = [0]
    def w1load(n):
        for _ in range(n):
            f = w1n[0]; w1n[0] += 1
            vm.op(f"buffer_load_dwordx4 a[{4*f}:{4*f+3}], v3, {WS}, s37 offen offset:{1024*(f & 3)}", "w1")
            if f & 3 == 3: k("s_add_u32 s37, s37, 4096")
    w1load(16)
    k(f"""v_and_b32 v5, 7, v0
    v_lshl_add_u32 v5, v5, 6, s35
    v_cvt_f32_u32 v5, v5
    v_mul_f32 v5, 0x3a000000, v5
    v_lshlrev_b32 v6, 1, v4
    v_cvt_f32_u32 v6, v6
    v_bfe_u32 v7, v0, 3, 1
    v_cvt_f32_u32 v7, v7
    v_mul_f32 v7, 0x3e800000, v7
    v_fmac_f32 v7, v5, v6
    s_cmp_eq_u32 s{sSIG}, 0
    s_cselect_b32 s39, 1, 0
    s_and_b32 s40, s39, s24
    s_cmp_eq_u32 s24, 0
    s_cselect_b32 s42, 0x3e000000, 0xbe000000
    s_cmp_eq_u32 s39, 1
    s_cselect_b32 s42, 0, s42
    s_cmp_eq_u32 s40, 1
    s_cselect_b32 s41, 0, 0x3e000000
    s_cselect_b32 s42, 0x3e000000, s42
    s_cselect_b32 s43, 0, 0xbe800000""".replace("s_cselect_b32 s42, 0x3e000000, 0xbe000000", "s_mov_b32 s42, 0xbe000000\n    s_cselect_b32 s42, 0x3e000000, s42"))
    import struct
    fl = lambda x: "0x%08x" % struct.unpack("<I", struct.pack("<f", x))[0]
    for ka in range(2):
        for h in range(2):
            for u in range(2):
                c = 16*ka + 8*h + u; t = OP + 4*(4*ka + 2*h + u)
                k(f"v_fmamk_f32 v{t}, v5, {fl(c)}, v7\nv_add_f32 v{t+1}, s43, v{t}\nv_cos_f32 v{t}, v{t}\nv_cos_f32 v{t+1}, v{t+1}")
    for x in range(8):
        t = OP + 4*x
        k(f"v_mul_f32 v{t}, s41, v{t}\nv_mul_f32 v{t+1}, s42, v{t+1}\nv_cvt_pk_f16_f32 v{S2C+x}, v{t}, v{t+1}")
    k(f"""v_lshrrev_b32 v5, 2, v0
    v_lshlrev_b32 v5, 7, v5
    v_and_b32 v6, 3, v0
    v_lshl_add_u32 v5, v6, 3, v5
    v_bfe_u32 v6, v0, 3, 2
    v_lshl_add_u32 v5, v6, 5, v5
    v_add_u32 v5, s29, v5
    v_and_b32 v8, 7, v0
    v_mul_u32_u24 v8, 2576, v8
    v_mul_u32_u24 v9, 320, v4
    v_add_u32 v8, v8, v9
    v_bfe_u32 v9, v0, 3, 1
    v_lshl_add_u32 v8, v9, 3, v8
    s_lshl_b32 s30, s26, 4
    s_add_u32 s30, s30, {LV}
    v_add_u32 v8, s30, v8
    s_mul_i32 s30, s{sW}, 5152
    s_add_u32 s30, s30, {LV}
    v_mul_u32_u24 v9, 160, v15
    v_add_u32 v9, s30, v9
    v_bfe_u32 v10, v0, 4, 1
    v_lshl_add_u32 v10, v10, 4, v9
    v_lshl_add_u32 v9, v4, 4, v9
    v_xor_b32 v6, 64, v5
    v_xor_b32 v7, 96, v5
    v_mov_b32 v4, v5
    v_xor_b32 v5, 32, v5""")
    stamp(k, 'setup', stamps)
    for i in range(3):
        vm.wait(("tw", i), "ha") if i == 0 else vm.wait(("tw", i))
        sk = None
        if i == 2:
            sk = k.label("q2"); k(f"s_cmp_ge_u32 s{sW}, 2\ns_cbranch_scc1 {sk}")
        for t in range(4):
            for ka in range(2):
                for h in range(2):
                    r = OP + 8*t + 4*ka + 2*h
                    k(f"ds_read_b64_tr_b16 v[{r}:{r+1}], v{4+t} offset:{8192*i + 4096*ka + 2048*h}")
        if i < 2: w1load(12)
        for t in range(4):
            for ka in range(2):
                r = OP + 8*t + 4*ka
                k(f"s_waitcnt lgkmcnt({14 - 4*t - 2*ka})")
                c = "0" if ka == 0 else f"v[{DD+4*t}:{DD+4*t+3}]"
                k(f"v_mfma_f32_16x16x32_f16 v[{DD+4*t}:{DD+4*t+3}], v[{r}:{r+3}], v[{S2C+4*ka}:{S2C+4*ka+3}], {c}")
        for hp in range(2):
            for r in range(4):
                k(f"v_cvt_pk_f16_f32 v{PK+2*r+hp}, v{DD+8*hp+r}, v{DD+8*hp+4+r}")
        for p in range(2):
            for hp in range(2): k(f"v_mov_b32 v{TMP+hp}, v{PK+4*p+hp}")
            for hp in range(2): k(f"v_mov_b32_dpp v{PK+4*p+hp}, v{PK+4*p+2+hp} row_ror:8 row_mask:0xf bank_mask:0xc")
            for hp in range(2): k(f"v_mov_b32_dpp v{PK+4*p+2+hp}, v{TMP+hp} row_ror:8 row_mask:0xf bank_mask:0x3")
        for p in range(2):
            for T in range(2):
                d = HD + 8*p + 4*T
                k(f"v_mfma_f32_16x16x32_f16 v[{d}:{d+3}], v[{HAC+4*T}:{HAC+4*T+3}], v[{PK+4*p}:{PK+4*p+3}], 0")
        for p in range(2):
            for T in range(2):
                for u in range(2):
                    d = HD + 8*p + 4*T + 2*u; w = TW + 16*i + 8*p + 4*T + 2*u; t = DD + 2*(4*p + 2*T + u)
                    k(f"v_pk_mul_f32 v[{t}:{t+1}], v[{d}:{d+1}], v[{w}:{w+1}] op_sel_hi:[1,0]")
                    k(f"v_pk_fma_f32 v[{t}:{t+1}], v[{d}:{d+1}], v[{w}:{w+1}], v[{t}:{t+1}] op_sel:[1,1,0] op_sel_hi:[0,1,1] neg_hi:[1,0,0]")
                    k(f"v_cvt_pk_f16_f32 v{WO+2*(2*T+u)+p}, v{t}, v{t+1}")
        for T in range(2):
            for u in range(2):
                r = WO + 2*(2*T + u)
                k(f"ds_write_b64 v8, v[{r}:{r+1}] offset:{(8*T + u)*160 + 16*i}")
        if sk: k.put(sk)
    vm.wait("hb")
    w1load(20)
    stamp(k, 'quads', stamps)
    k("s_waitcnt lgkmcnt(0)\ns_barrier")
    k(f"v_add_u32 v213, {LHB}, v3")
    order = []
    for ks in range(3):
        for R in range(2):
            r = OP + 12*R + 4*ks
            k(f"ds_read_b128 v[{r}:{r+3}], v{10 if ks == 2 else 9} offset:{2576*R + 64*ks}")
        for tp in range(3):
            r = HBC + 4*(3*tp + ks)
            k(f"ds_read_b128 v[{r}:{r+3}], v213 offset:{1024*(3*tp + ks)}")
    for ks in range(3):
        for tp in range(3):
            k(f"s_waitcnt lgkmcnt({12 - 5*ks - tp})")
            for R in range(2):
                d = DD + 12*R + 4*tp; a = OP + 12*R + 4*ks; b = HBC + 4*(3*tp + ks)
                c = "0" if ks == 0 else f"v[{d}:{d+3}]"
                k(f"v_mfma_f32_16x16x32_f16 v[{d}:{d+3}], v[{a}:{a+3}], v[{b}:{b+3}], {c}")
    vm.wait("res")
    TU = 32
    for x in range(12): k(f"v_lshlrev_b32 v{TU+2*x}, 16, v{RES+x}\nv_and_b32 v{TU+2*x+1}, 0xffff0000, v{RES+x}")
    k("s_mov_b32 s44, 0x41000000")
    for x in range(12):
        k(f"v_pk_fma_f32 v[{DD+2*x}:{DD+2*x+1}], v[{DD+2*x}:{DD+2*x+1}], s[44:45], v[{TU+2*x}:{TU+2*x+1}] op_sel_hi:[1,0,1]")
    Q = 56
    def packstore(base, tagname):
        for tp in range(3):
            for R in range(2):
                for x in range(2):
                    s = DD + 12*R + 4*tp + 2*x
                    k(f"v_cvt_pk_bf16_f32 v{Q+4*tp+2*R+x}, v{s}, v{s+1}")
        k(f"s_add_u32 s30, s33, {base}")
        for tp in range(3):
            for x in range(2): k(f"v_permlane16_swap_b32 v{Q+4*tp+x}, v{Q+4*tp+2+x}")
            vm.op(f"buffer_store_dwordx4 v[{Q+4*tp}:{Q+4*tp+3}], v{14 if tp == 2 else 13}, {WS}, s30 offen offset:{512*tp} sc1", tagname)
    def reduce2(a, b, t):
        k(f"""v_permlane32_swap_b32 v{a}, v{b}
        v_add_f32 v{a}, v{a}, v{b}
        v_mov_b32 v{t}, v{a}
        v_permlane16_swap_b32 v{t}, v{a}
        v_add_f32 v{a}, v{a}, v{t}""")
        for m in ("quad_perm:[1,0,3,2]", "quad_perm:[2,3,0,1]", "row_half_mirror", "row_mirror"):
            k(f"v_add_f32_dpp v{a}, v{a}, v{a} {m} row_mask:0xf bank_mask:0xf")
    SA = 70
    for R in range(2):
        k(f"v_pk_add_f32 v[{SA+2*R}:{SA+2*R+1}], v[{DD+12*R}:{DD+12*R+1}], v[{DD+12*R+2}:{DD+12*R+3}]")
    for x in range(2, 6):
        for R in range(2):
            k(f"v_pk_add_f32 v[{SA+2*R}:{SA+2*R+1}], v[{SA+2*R}:{SA+2*R+1}], v[{DD+12*R+2*x}:{DD+12*R+2*x+1}]")
    for R in range(2): k(f"v_add_f32 v{SA+2*R}, v{SA+2*R}, v{SA+2*R+1}")
    reduce2(SA, SA + 2, SA + 1)
    k(f"v_mul_f32 v{SA}, 0x3acccccd, v{SA}")
    packstore(X1, "x1st")
    k(f"v_readlane_b32 s46, v{SA}, 0\nv_readlane_b32 s48, v{SA}, 32")
    for R in range(2):
        for x in range(6):
            d = DD + 12*R + 2*x
            if x < 4: k(f"v_pk_add_f32 v[{d}:{d+1}], v[{d}:{d+1}], s[{46+2*R}:{47+2*R}] op_sel_hi:[1,0] neg_lo:[0,1] neg_hi:[0,1]")
            else: k(f"v_pk_fma_f32 v[{d}:{d+1}], v[212:213], s[{46+2*R}:{47+2*R}], v[{d}:{d+1}] op_sel_hi:[0,0,1] neg_lo:[0,1,0] neg_hi:[0,1,0]")
    for R in range(2):
        k(f"v_pk_mul_f32 v[{SA+2*R}:{SA+2*R+1}], v[{DD+12*R}:{DD+12*R+1}], v[{DD+12*R}:{DD+12*R+1}]")
    for x in range(1, 6):
        for R in range(2):
            d = DD + 12*R + 2*x
            k(f"v_pk_fma_f32 v[{SA+2*R}:{SA+2*R+1}], v[{d}:{d+1}], v[{d}:{d+1}], v[{SA+2*R}:{SA+2*R+1}]")
    for R in range(2): k(f"v_add_f32 v{SA+2*R}, v{SA+2*R}, v{SA+2*R+1}")
    reduce2(SA, SA + 2, SA + 1)
    k(f"v_mov_b32 v{SA+1}, 0x3727c5ac\nv_fmac_f32 v{SA+1}, 0x3acccccd, v{SA}\nv_rsq_f32 v{SA}, v{SA+1}\ns_nop 0")
    k(f"v_readlane_b32 s46, v{SA}, 0\nv_readlane_b32 s48, v{SA}, 32")
    for R in range(2):
        for x in range(6):
            d = DD + 12*R + 2*x
            k(f"v_pk_mul_f32 v[{d}:{d+1}], v[{d}:{d+1}], s[{46+2*R}:{47+2*R}] op_sel_hi:[1,0]")
    Q = 72
    packstore(XN, "xnst")
    stamp(k, 'hb_ln', stamps)
    if stop == "p2":
        stamp_flush(k, 1, stamps); k.put(done); k("s_endpgm"); return k, kc
    vD, vA0, vA1, v8l, RING, ACC, PKO = 1, 4, 5, 2, 8, 24, 48
    W2V = 64
    k(f"""v_lshrrev_b32 v6, 3, v0
    v_and_b32 v7, 7, v0
    v_xor_b32 v7, v7, v6
    v_mul_u32_u24 v{vD}, 1280, v6
    v_lshl_add_u32 v{vD}, v7, 4, v{vD}
    v_lshrrev_b32 v6, 4, v0
    v_and_b32 v7, 7, v0
    v_xor_b32 v6, v6, v7
    v_lshlrev_b32 v6, 4, v6
    v_lshl_add_u32 v6, v7, 7, v6
    v_bfe_u32 v7, v0, 3, 1
    v_lshl_add_u32 v{vA0}, v7, 10, v6
    v_xor_b32 v{vA1}, 64, v{vA0}
    v_lshlrev_b32 v{v8l}, 3, v0
    s_lshr_b32 s26, s{sW}, 1
    s_and_b32 s27, s{sW}, 1
    s_mul_i32 s28, s{sCL}, 81920
    s_mul_i32 s29, s26, 10240
    s_add_u32 s28, s28, s29
    s_mul_i32 s29, s27, 640
    s_add_u32 s28, s28, s29
    s_add_u32 s28, s28, {XN}
    s_mul_i32 s29, s27, 10240
    s_lshl_b32 s26, s26, 10
    s_add_u32 s29, s29, s26
    s_lshl_b32 s40, s{sCL}, 3
    s_add_u32 s41, s40, s{sJ}
    s_mul_i32 s41, s41, 24576
    s_add_u32 s41, s41, {H}
    s_lshl_b32 s42, s{sW}, 9
    s_add_u32 s42, s42, s41
    s_add_u32 s42, s42, 4096
    s_lshl_b32 s43, s{sW}, 10
    s_add_u32 s41, s41, s43""")
    sync(k, vm, 0, 6)
    stamp(k, 'sync1', stamps)
    k("s_mov_b32 m0, s29")
    for mu in range(4):
        for i in range(5):
            vm.op(f"buffer_load_dwordx4 v{vD}, {WS}, s28 offen{SC} lds", ("xn", mu))
            if i < 4: k("s_add_u32 s28, s28, 128\ns_add_u32 m0, m0, 2048")
            elif mu < 3: k(f"s_add_u32 s28, s28, {20480 - 512}\ns_add_u32 m0, m0, {20480 - 8192}")
    w2n = [0]
    def w2reg(f): return f"v[{W2V+4*f}:{W2V+4*f+3}]" if f < 48 else f"a[{4*(f-48)}:{4*(f-48)+3}]"
    def w2load(n):
        for _ in range(n):
            f = w2n[0]; w2n[0] += 1
            vm.op(f"buffer_load_dwordx4 {w2reg(f)}, v3, {WS}, s38 offen offset:{1024*(f & 3)}", "w2")
            if f & 3 == 3: k("s_add_u32 s38, s38, 4096")
    def xread(s):
        mu, ka = divmod(s, 20); r = RING + 4*(s & 3)
        if mu == 3 and ka == 0: k(f"v_add_u32 v{vA0}, 61440, v{vA0}\nv_add_u32 v{vA1}, 61440, v{vA1}")
        k(f"ds_read_b128 v[{r}:{r+3}], v{vA1 if ka & 1 else vA0} offset:{(20480*mu if mu < 3 else 0) + 2048*(ka >> 1)}")
    def g1_epi(mu):
        a = ACC + 12*(mu & 1); ops = []
        for x in range(6): ops.append(f"v_cvt_pk_bf16_f32 v{PKO+x}, v{a+2*x}, v{a+2*x+1}")
        for x in range(6): ops.append(f"v_pk_max_i16 v{PKO+x}, v{PKO+x}, 0")
        ops.append(("vm", f"buffer_store_dwordx4 v[{PKO}:{PKO+3}], v3, {WS}, s41 offen sc1"))
        ops.append(("vm", f"buffer_store_dwordx2 v[{PKO+4}:{PKO+5}], v{v8l}, {WS}, s42 offen sc1"))
        ops.append("s_add_u32 s41, s41, 6144\ns_add_u32 s42, s42, 6144")
        return ops
    vm.wait(("xn", 0)); k("s_barrier")
    stamp(k, 'xn0', stamps)
    for s in range(3): xread(s)
    epi = []
    for s in range(80):
        mu, ka = divmod(s, 20)
        if ka == 16 and mu < 3:
            vm.wait(("xn", mu + 1)); k("s_barrier")
        if s + 3 < 80: xread(s + 3)
        k(f"s_waitcnt lgkmcnt({min(3, 79 - s)})")
        r = RING + 4*(s & 3)
        for nu in range(3):
            d = ACC + 12*(mu & 1) + 4*nu; f = 3*ka + nu
            c = "0" if ka == 0 else f"v[{d}:{d+3}]"
            k(f"v_mfma_f32_16x16x32_bf16 v[{d}:{d+3}], a[{4*f}:{4*f+3}], v[{r}:{r+3}], {c}")
            if nu == 0 and s < 48 and 'now2' not in OPT: w2load(1)
            if nu >= 1 and ka >= 3 and epi:
                o = epi.pop(0)
                if isinstance(o, tuple): vm.op(o[1], "hst")
                else: k(o)
        if ka == 19: epi = g1_epi(mu)
    for o in epi:
        if isinstance(o, tuple): vm.op(o[1], "hst")
        else: k(o)
    stamp(k, 'g1', stamps)
    if stop == "g1":
        stamp_flush(k, 1, stamps); k.put(done); k("s_endpgm"); return k, kc
    GA, HR = 48, 128
    vH8, vPW, vRS, vOS, RS2, S1C = 1, 4, 5, 6, 8, 18
    k(f"""v_add_u32 v{vH8}, 4096, v{v8l}
    s_lshl_b32 s26, s{sW}, 1
    s_add_u32 s26, s26, s40
    s_mul_i32 s26, s26, 24576
    s_add_u32 s26, s26, {H}
    s_add_u32 s27, s26, 24576
    v_and_b32 v7, 15, v0
    v_lshrrev_b32 v30, 4, v0
    v_lshlrev_b32 v30, 3, v30
    v_mul_u32_u24 v{vRS}, 1280, v7
    v_add_u32 v{vRS}, v{vRS}, v30
    s_mul_i32 s28, s{sCL}, 81920
    s_mul_i32 s29, s{sW}, 20480
    s_add_u32 s28, s28, s29
    s_mul_i32 s29, s{sJ}, 160
    s_add_u32 s28, s28, s29
    s_add_u32 s31, s28, {X2}
    s_add_u32 s28, s28, {X1}
    s_lshr_b32 s32, s{sW}, 1
    s_lshl_b32 s32, s32, 5
    s_and_b32 s33, s{sW}, 1
    s_lshl_b32 s33, s33, 10
    s_add_u32 s32, s32, s33
    s_add_u32 s32, s32, s{sSIG}
    s_mul_i32 s32, s32, 1280
    s_add_u32 s32, s32, s29
    s_cmp_eq_u32 s{sMODE}, 0
    s_cselect_b32 s31, s31, s32
    s_mov_b32 s32, 81920
    s_cselect_b32 s32, 1280, s32
    v_mul_lo_u32 v{vOS}, v7, s32
    v_add_u32 v{vOS}, v{vOS}, v30
    s_lshl_b32 s33, s{sW}, 11""")
    sync(k, vm, 1, 32, between=lambda: w2load(12))
    stamp(k, 'sync2', stamps)
    vm.q = ["w2"]*12
    def hload(mu, ks):
        pi, kp = divmod(ks, 6); r = HR + 48*(mu & 1) + 4*ks
        if kp < 4: vm.op(f"buffer_load_dwordx4 a[{r}:{r+3}], v3, {WS}, s{26+pi} offen offset:{1024*kp}{SC}", ("h", mu, ks))
        else:
            for x in range(2):
                vm.op(f"buffer_load_dwordx2 a[{r+2*x}:{r+2*x+1}], v{vH8}, {WS}, s{26+pi} offen offset:{512*(2*(kp-4)+x)}{SC}", ("h", mu, ks))
        if ks == 11: k("s_add_u32 s26, s26, 6144\ns_add_u32 s27, s27, 6144")
    for mu in range(2):
        for ks in range(12): hload(mu, ks)
    for de in range(5): vm.op(f"buffer_load_dwordx2 v[{RS2+2*de}:{RS2+2*de+1}], v{vRS}, {WS}, s28 offen offset:{32*de}{SC}", "rs2")
    for ka in range(2): vm.op(f"buffer_load_dwordx4 v[{S1C+4*ka}:{S1C+4*ka+3}], v3, {TS}, s33 offen offset:{T_S1 + 1024*ka}", "s1c")
    def pw_addr(mu):
        k(f"s_sub_u32 s34, s{sW}, {mu+1}\ns_and_b32 s34, s34, 3\ns_mul_i32 s34, s34, 5120\ns_add_u32 s34, s34, {20480*mu}\nv_add_u32 v{vPW}, s34, v3")
    for mu in range(4):
        for ks in range(12):
            vm.wait(("h", mu, ks))
            if ks == 0: stamp(k, f'g2w{mu}', stamps)
            r = HR + 48*(mu & 1) + 4*ks
            for de in range(5):
                d = GA + 20*mu + 4*de
                c = "0" if ks == 0 else f"a[{d}:{d+3}]"
                k(f"v_mfma_f32_16x16x32_bf16 a[{d}:{d+3}], {w2reg(5*ks + de)}, a[{r}:{r+3}], {c}")
                if de == 1 and mu >= 1 and ks == 0: pw_addr(mu - 1)
                if de == 2 and mu >= 1 and 2 <= ks < 7:
                    dd = GA + 20*(mu - 1) + 4*(ks - 2)
                    k(f"ds_write_b128 v{vPW}, a[{dd}:{dd+3}] offset:{1024*(ks - 2)}")
            if mu < 2: hload(mu + 2, ks)
    pw_addr(3)
    for de in range(5):
        dd = GA + 60 + 4*de
        k(f"ds_write_b128 v{vPW}, a[{dd}:{dd+3}] offset:{1024*de}")
    stamp(k, 'g2', stamps)
    OWN, PR = 64, 84
    ls = [k.label("own") for _ in range(5)]
    for mu in range(4):
        k.put(ls[mu])
        if mu < 3: k(f"s_cmp_lg_u32 s{sW}, {mu}\ns_cbranch_scc1 {ls[mu+1]}")
        for x in range(20): k(f"v_accvgpr_read_b32 v{OWN+x}, a{GA+20*mu+x}")
        if mu < 3: k(f"s_branch {ls[4]}")
    k.put(ls[4])
    k(f"s_mul_i32 s34, s{sW}, 20480\nv_add_u32 v{vPW}, s34, v3")
    vm.wait("rs2", "s1c")
    k("s_waitcnt lgkmcnt(0)\ns_barrier")
    for sl in range(3):
        for de in range(5):
            r = PR + 20*sl + 4*de
            k(f"ds_read_b128 v[{r}:{r+3}], v{vPW} offset:{5120*sl + 1024*de}")
    TU = 144
    for x in range(10): k(f"v_lshlrev_b32 v{TU+2*x}, 16, v{RS2+x}\nv_and_b32 v{TU+2*x+1}, 0xffff0000, v{RS2+x}")
    for x in range(10): k(f"v_pk_add_f32 v[{OWN+2*x}:{OWN+2*x+1}], v[{OWN+2*x}:{OWN+2*x+1}], v[{TU+2*x}:{TU+2*x+1}]")
    for sl in range(3):
        for de in range(5):
            k(f"s_waitcnt lgkmcnt({14 - 5*sl - de})")
            for x in range(2):
                o, r = OWN + 4*de + 2*x, PR + 20*sl + 4*de + 2*x
                k(f"v_pk_add_f32 v[{o}:{o+1}], v[{o}:{o+1}], v[{r}:{r+1}]")
    for x in range(10): k(f"v_cvt_pk_bf16_f32 v{RS2+x}, v{OWN+2*x}, v{OWN+2*x+1}")
    for de in range(5): vm.op(f"buffer_store_dwordx2 v[{RS2+2*de}:{RS2+2*de+1}], v{vOS}, {OS}, s31 offen offset:{32*de}", "ost")
    stamp(k, 'red', stamps)
    fin = k.label("fin")
    k(f"s_cmp_eq_u32 s{sMODE}, 1\ns_cbranch_scc1 {fin}")
    def redg(a, t):
        k(f"v_mov_b32 v{t}, v{a}\nv_permlane16_swap_b32 v{t}, v{a}\nv_add_f32 v{a}, v{a}, v{t}\nv_mov_b32 v{t}, v{a}\nv_permlane32_swap_b32 v{t}, v{a}\nv_add_f32 v{a}, v{a}, v{t}")
    SA = 30
    k(f"v_pk_add_f32 v[{SA}:{SA+1}], v[{OWN}:{OWN+1}], v[{OWN+2}:{OWN+3}]")
    for x in range(2, 10): k(f"v_pk_add_f32 v[{SA}:{SA+1}], v[{SA}:{SA+1}], v[{OWN+2*x}:{OWN+2*x+1}]")
    k(f"v_add_f32 v{SA}, v{SA}, v{SA+1}")
    redg(SA, SA + 1)
    k(f"v_mul_f32 v{SA+2}, 0x3c4ccccd, v{SA}")
    for x in range(10): k(f"v_pk_add_f32 v[{TU+2*x}:{TU+2*x+1}], v[{OWN+2*x}:{OWN+2*x+1}], v[{SA+2}:{SA+3}] op_sel_hi:[1,0] neg_lo:[0,1] neg_hi:[0,1]")
    k(f"v_pk_mul_f32 v[{SA+4}:{SA+5}], v[{TU}:{TU+1}], v[{TU}:{TU+1}]")
    for x in range(1, 10): k(f"v_pk_fma_f32 v[{SA+4}:{SA+5}], v[{TU+2*x}:{TU+2*x+1}], v[{TU+2*x}:{TU+2*x+1}], v[{SA+4}:{SA+5}]")
    k(f"v_add_f32 v{SA+4}, v{SA+4}, v{SA+5}")
    redg(SA + 4, SA + 5)
    k(f"""v_mov_b32 v{SA+1}, v{SA+4}
    v_lshlrev_b32 v7, 3, v7
    s_lshl_b32 s34, s{sCL}, 12
    s_lshl_b32 s35, s{sW}, 7
    s_add_u32 s34, s34, s35
    s_add_u32 s34, s34, {ST}
    s_lshl_b32 s35, s{sJ}, 9
    s_add_u32 s35, s35, s34
    s_mov_b64 exec, 0xffff
    buffer_store_dwordx2 v[{SA}:{SA+1}], v7, {WS}, s35 offen sc1
    s_mov_b64 exec, -1
    v_lshrrev_b32 v{SA+2}, 4, v0
    v_lshl_add_u32 v7, v{SA+2}, 10, v7""")
    body, body4 = s1_stage(k, vm, LX, sW, S1C, [0, 1], True, U1, 170)
    k(f"""v_and_b32 v{SA+3}, 15, v0
    v_mul_u32_u24 v{SA+3}, 160, v{SA+3}
    v_lshl_add_u32 v{SA+3}, v{SA+2}, 3, v{SA+3}
    s_mul_i32 s35, s{sW}, 2560
    s_add_u32 s35, s35, {LX}
    v_add_u32 v{SA+3}, s35, v{SA+3}
    s_mov_b32 s57, 0""")
    lp, ok = k.label("sp"), k.label("sok")
    P = 36
    k.put(lp)
    k(f"""buffer_load_dwordx2 v[{P}:{P+1}], v7, {WS}, s34 offen sc1
    buffer_load_dwordx2 v[{P+2}:{P+3}], v7, {WS}, s34 offen offset:512 sc1
    s_add_u32 s57, s57, 1
    s_cmp_gt_u32 s57, 0x80000
    s_cbranch_scc1 {ok}
    s_waitcnt vmcnt(0)
    v_and_b32 v{P+4}, v{P}, v{P+1}
    v_and_b32 v{P+5}, v{P+2}, v{P+3}
    v_max_u32 v{P+4}, v{P+4}, v{P+5}
    v_cmp_eq_u32 vcc, -1, v{P+4}
    s_cbranch_vccnz {lp}""")
    k.put(ok)
    vm.drain()
    stamp(k, 'stats', stamps)
    k(f"v_add_f32 v{SA}, v{P}, v{P+2}")
    redg(SA, SA + 1)
    k(f"""v_mul_f32 v{SA}, 0x3acccccd, v{SA}
    v_fma_f32 v{P}, v{P}, s45, -v{SA}
    v_fma_f32 v{P+2}, v{P+2}, s45, -v{SA}
    v_mul_f32 v{P}, v{P}, v{P}
    v_fmac_f32 v{P}, v{P+2}, v{P+2}
    v_add_f32 v{P+1}, v{P+1}, v{P+3}
    v_fmac_f32 v{P+1}, 0x42a00000, v{P}""".replace("v_mul_f32 v30, 0x3acccccd, v30", "s_mov_b32 s45, 0x3c4ccccd\n    v_mul_f32 v30, 0x3acccccd, v30"))
    redg(P + 1, P)
    k(f"""v_mov_b32 v{SA+1}, 0x3727c5ac
    v_fmac_f32 v{SA+1}, 0x3acccccd, v{P+1}
    v_rsq_f32 v{SA+1}, v{SA+1}
    s_nop 0
    v_mul_f32 v{SA}, v{SA}, v{SA+1}""")
    for x in range(10):
        o = OWN + 2*x
        k(f"v_pk_fma_f32 v[{o}:{o+1}], v[{o}:{o+1}], v[{SA}:{SA+1}], v[{SA}:{SA+1}] op_sel:[0,1,0] op_sel_hi:[1,1,0] neg_lo:[0,0,1] neg_hi:[0,0,1]")
    for x in range(10): k(f"v_cvt_pk_f16_f32 v{TU+x}, v{OWN+2*x}, v{OWN+2*x+1}")
    for de in range(5): k(f"ds_write_b64 v{SA+3}, v[{TU+2*de}:{TU+2*de+1}] offset:{32*de}")
    k("s_waitcnt lgkmcnt(0)\ns_barrier")
    body(); body4()
    stamp(k, 's1', stamps)
    k.put(fin)
    stamp_flush(k, 1, stamps, sadd=sMODE)
    if 'dbg2' in OPT:
        e = k.label("nd2")
        nm = k.stn
        k(f'''s_cmp_lg_u32 s2, 0
        s_cbranch_scc1 {e}
        s_cmp_lg_u32 s{sW}, 0
        s_cbranch_scc1 {e}
        s_cmp_lg_u32 s{sMODE}, 1
        s_cbranch_scc1 {e}
        s_load_dwordx2 s[52:53], s[0:1], 72
        s_waitcnt vmcnt(0) lgkmcnt(0)
        s_mov_b32 s54, 256
        s_mov_b32 s55, 0x20000
        s_mov_b32 s56, {STAMP}
        v_mov_b32 v1, 0
        buffer_load_dword v3, v1, {WS}, s56 offen sc1''')
        spec = os.environ.get("DBGSEL", "0.0.0.min 0.0.0.max 0.0.1.max 0.0.3.max 3.0.1.max 3.0.2.max 3.1.1.max 3.1.2.max 1.0.start.min 1.0.start.max 1.0.s1.min 1.0.s1.max 2.0.start.min 2.0.start.max 2.0.red.min 2.0.red.max").split()
        k("v_lshlrev_b32 v4, 12, v0\ns_waitcnt vmcnt(0)\nv_readfirstlane_b32 s40, v3")
        for i, sp in enumerate(spec):
            sl, row, ix, op = sp.split("."); ix = nm.index(ix) if ix in nm else int(ix)
            k(f"s_mov_b32 s56, {STAMP + int(sl)*0x40000 + int(row)*128 + 4*ix}")
            for q in range(4): k(f"buffer_load_dword v{8+q}, v4, {WS}, s56 offen offset:{1024*q} sc1")
            k("s_waitcnt vmcnt(0)")
            for q in range(4): k(f"v_subrev_u32 v{8+q}, s40, v{8+q}")
            k(f"v_{op}_i32 v8, v8, v9\nv_{op}_i32 v10, v10, v11\nv_{op}_i32 v8, v8, v10\nv_readlane_b32 s41, v8, 0")
            for l in range(1, 64): k(f"v_readlane_b32 s42, v8, {l}\ns_{op}_i32 s41, s41, s42")
            k(f"v_mov_b32 v8, s41\nbuffer_store_dword v8, v1, s[52:55], 0 offen offset:{4*i}")
        k.put(e)
    k.put(done); k("s_endpgm")
    return k, kc

if __name__ == "__main__":
    path = sys.argv[1]; opts = sys.argv[2].split(",") if len(sys.argv) > 2 else []
    st = "stamp" in opts; OPT.update(opts)
    stop = "p2" if "p2" in opts else "g1" if "g1" in opts else None
    kb, kc = gen_kb(st, stop)
    L = [gen_ka(st, 'dbg' in opts), kb] + ([kc] if "nokc" not in opts and not stop else [])
    finish(L, path)
```

```python
import sys
from asmlib import *
import asmlib, hazard, tables
S, D, F = 2048, 640, 1536
U0, XN, X1, X2, H, W1F, W2F, ST, FL, STAMP, U1 = 0, 0x280000, 0x500000, 0x780000, 0xA00000, 0x1000000, 0x11E0000, 0x13C0000, 0x13E0000, 0x1400000, 0x1500000
TOFF, TBLOB = tables.blob()
T_S1, T_HA, T_HB, T_TW = TOFF
OOB = 0x20000000
WS, XS, OS, TS = "s[4:7]", "s[8:11]", "s[12:15]", "s[16:19]"
sW, sJ, sCL, sSIG = 20, 21, 22, 23

class VM:
    def __init__(self, k): self.k, self.q = k, []
    def op(self, s, tag=None): self.k(s); self.q.append(tag); assert len(self.q) <= 63 or True
    def wait(self, *tags):
        ii = [i for i, t in enumerate(self.q) if t in tags]
        if not ii: return
        idx = max(ii)
        n = len(self.q) - 1 - idx
        assert n <= 63
        self.k(f"s_waitcnt vmcnt({n})"); self.q = self.q[idx + 1:]
    def drain(self): self.k("s_waitcnt vmcnt(0)"); self.q = []

def ids(k, done):
    k(f"s_cmp_ge_u32 s2, 256\ns_cbranch_scc1 {done}")
def ids2(k):
    k(f"""s_lshr_b32 s3, s2, 3
    s_and_b32 s{sJ}, s3, 7
    s_lshr_b32 s3, s2, 6
    s_and_b32 s24, s2, 7
    s_lshl_b32 s{sCL}, s24, 2
    s_add_u32 s{sCL}, s{sCL}, s3
    s_lshr_b32 s25, s{sCL}, 1
    s_sub_u32 s26, 32, s25
    s_cmp_eq_u32 s25, 0
    s_cselect_b32 s26, 16, s26
    s_bitcmp1_b32 s3, 0
    s_cselect_b32 s{sSIG}, s26, s25
    v_lshrrev_b32 v1, 6, v0
    v_and_b32 v0, 63, v0
    v_readfirstlane_b32 s{sW}, v1""")
def tblsrd(k, total_from="code_start"):
    l = k.label("pc")
    k("s_getpc_b64 s[16:17]"); k.put(l)
    k(f"s_add_u32 s16, s16, tbl-{l}\ns_addc_u32 s17, s17, 0\ns_mov_b32 s18, {len(TBLOB)}\ns_mov_b32 s19, 0x20000")

def stamp(k, n, on):
    if not on: return
    if not hasattr(k, "stn"): k.stn = []
    i = len(k.stn); k.stn.append(str(n)); assert i < 20
    k(f"s_memrealtime s[{60+2*i}:{61+2*i}]")
def stamp_flush(k, slot, on, sadd=None):
    if not on: return
    k("s_waitcnt lgkmcnt(0)")
    k(f"s_lshl_b32 s58, s2, 3\ns_add_u32 s58, s58, s{sW}\ns_lshl_b32 s58, s58, 7\ns_add_u32 s58, s58, {STAMP + slot*0x40000}\nv_mov_b32 v1, 0")
    if sadd: k(f"s_mul_i32 s56, s{sadd}, 0x40000\ns_add_u32 s58, s58, s56")
    for i in range(len(k.stn)):
        k(f"v_mov_b32 v2, s{60+2*i}\nbuffer_store_dword v2, v1, {WS}, s58 offen offset:{4*i}")
    k("; STAMPNAMES " + k.name + " " + " ".join(k.stn))

def s1_stage(k, vm, xl, nt_s, cst, tiles_pairs, with4, ubase, vt, gq_s=None):
    a0, a4, vo, vo4, op, acc = vt, vt + 1, vt + 2, vt + 3, vt + 4, vt + 20
    k(f"""v_lshrrev_b32 v{a0}, 2, v0
    v_mul_u32_u24 v{a0}, 160, v{a0}
    v_and_b32 v{a4}, 1, v0
    v_lshl_add_u32 v{a4}, v{a4}, 3, v{a0}
    v_bfe_u32 v{vo}, v0, 1, 1
    v_mul_u32_u24 v{vo}, 80, v{vo}
    v_add3_u32 v{a4}, v{a4}, v{vo}, 64
    v_and_b32 v{vo}, 3, v0
    v_lshl_add_u32 v{a0}, v{vo}, 3, v{a0}
    v_bfe_u32 v{vo}, v0, 1, 3
    v_mul_u32_u24 v{vo}, 81920, v{vo}
    v_and_b32 v{vo4}, 1, v0
    v_lshl_add_u32 v{vo}, v{vo4}, 7, v{vo}
    v_bfe_u32 v{op}, v0, 4, 1
    v_lshl_add_u32 v{vo4}, v{op}, 13, v{vo}
    v_lshrrev_b32 v{op}, 5, v0
    v_lshl_add_u32 v{vo4}, v{op}, 3, v{vo4}
    v_lshrrev_b32 v{op}, 4, v0
    v_lshl_add_u32 v{vo}, v{op}, 13, v{vo}
    s_mul_i32 s30, s{nt_s}, 655360
    s_lshl_b32 s31, s{sSIG}, 8
    s_add_u32 s30, s30, s31
    s_lshl_b32 s31, s{sJ}, 4
    s_add_u32 s30, s30, s31
    s_add_u32 s30, s30, {ubase}
    s_add_u32 s32, s30, 65536""")
    if xl >= 49152:
        k(f"v_add_u32 v{a0}, {xl}, v{a0}\nv_add_u32 v{a4}, {xl}, v{a4}"); xl = 0
    if gq_s is not None:
        k(f"s_lshl_b32 s31, s{gq_s}, 5\nv_add_u32 v{a0}, s31, v{a0}\ns_lshl_b32 s31, s{gq_s}, 15\ns_add_u32 s30, s30, s31")
    def body():
        for gq in tiles_pairs:
            for bit in range(2):
                for ka in range(2):
                    for h in range(2):
                        r = op + 8*bit + 4*ka + 2*h
                        k(f"ds_read_b64_tr_b16 v[{r}:{r+1}], v{a0} offset:{xl + (32*ka + 16*h)*160 + 80*bit + 32*gq}")
            for bit in range(2):
                for ka in range(2):
                    r = op + 8*bit + 4*ka
                    k(f"s_waitcnt lgkmcnt({6 - 4*bit - 2*ka})")
                    c = "0" if ka == 0 else f"v[{acc+4*bit}:{acc+4*bit+3}]"
                    k(f"v_mfma_f32_16x16x32_f16 v[{acc+4*bit}:{acc+4*bit+3}], v[{r}:{r+3}], v[{cst+4*ka}:{cst+4*ka+3}], {c}")
            for x in range(4):
                k(f"v_cvt_pk_f16_f32 v{acc+8+x}, v{acc+2*x}, v{acc+2*x+1}")
            if gq: k(f"s_add_u32 s33, s30, {gq*32768}")
            vm.op(f"buffer_store_dwordx4 v[{acc+8}:{acc+11}], v{vo}, {WS}, s{33 if gq else 30} offen")
    def body4():
        for ka in range(2):
            for h in range(2):
                r = op + 4*ka + 2*h
                k(f"ds_read_b64_tr_b16 v[{r}:{r+1}], v{a4} offset:{xl + (32*ka + 16*h)*160}")
        for ka in range(2):
            k(f"s_waitcnt lgkmcnt({2 - 2*ka})")
            c = "0" if ka == 0 else f"v[{acc}:{acc+3}]"
            k(f"v_mfma_f32_16x16x32_f16 v[{acc}:{acc+3}], v[{op+4*ka}:{op+4*ka+3}], v[{cst+4*ka}:{cst+4*ka+3}], {c}")
        k(f"v_cvt_pk_f16_f32 v{acc+12}, v{acc}, v{acc+1}\nv_cvt_pk_f16_f32 v{acc+13}, v{acc+2}, v{acc+3}")
        vm.op(f"buffer_store_dwordx2 v[{acc+12}:{acc+13}], v{vo4}, {WS}, s32 offen")
    return body, body4

def dbgstamp(k, idx_base):
    e = k.label('dbg')
    k(f'''s_cmp_ge_u32 s2, 8
    s_cbranch_scc1 {e}
    s_load_dwordx2 s[52:53], s[0:1], 72
    s_waitcnt vmcnt(0)
    s_memrealtime s[54:55]
    s_waitcnt lgkmcnt(0)
    s_sub_u32 s54, s54, s60
    s_mov_b32 s56, s52
    s_mov_b32 s57, s53
    s_mov_b32 s58, 256
    s_mov_b32 s59, 0x20000
    s_lshl_b32 s55, s2, 2
    v_mov_b32 v1, 0
    v_mov_b32 v2, s54
    buffer_store_dword v2, v1, s[56:59], s55 offen offset:{4*idx_base}''')
    k.put(e)
def prepstamp(k, on):
    if not on: return
    k(f'''s_waitcnt vmcnt(0)
    s_memrealtime s[64:65]
    s_waitcnt lgkmcnt(0)
    s_lshl_b32 s58, s2, 3
    s_add_u32 s58, s58, s27
    s_lshl_b32 s58, s58, 7
    s_add_u32 s58, s58, {STAMP + 3*0x40000}
    v_mov_b32 v1, 0''')
    for i in range(3): k(f"v_mov_b32 v2, s{60+2*i}\nbuffer_store_dword v2, v1, {WS}, s58 offen offset:{4*i}")
def gen_ka(stamps=False, dbg=False):
    k = K("ka_kernel", 256, 640, lds=10240 + 2*12288, vgpr=104)
    done = k.label("done"); prep = k.label("prep")
    ids(k, done)
    k("s_load_dwordx2 s[8:9], s[0:1], 0\ns_load_dwordx4 s[36:39], s[0:1], 48\ns_load_dwordx2 s[4:5], s[0:1], 80")
    stamp(k, 0, stamps)
    if dbg: k("s_memrealtime s[60:61]")
    tblsrd(k); ids2(k)
    k(f"s_mov_b32 s10, {S*D*2}\ns_mov_b32 s11, 0x20000\ns_mov_b32 s6, 0x10000000\ns_mov_b32 s7, 0x20000")
    if dbg:
        e3 = k.label("e3")
        k(f"s_or_b32 s24, s2, s{sW}\ns_cmp_lg_u32 s24, 0\ns_cbranch_scc1 {e3}\ns_waitcnt lgkmcnt(0)\nv_mov_b32 v2, s60\nv_mov_b32 v3, 0\ns_mov_b32 s24, {STAMP + 0xF0000}\nbuffer_store_dword v2, v3, {WS}, s24 offen\ns_waitcnt vmcnt(0)")
        k.put(e3)
    k(f"s_cmp_ge_u32 s{sW}, 8\ns_cbranch_scc1 {prep}")
    vm = VM(k)
    k(f"""v_lshrrev_b32 v2, 4, v0
    v_mul_u32_u24 v2, 81920, v2
    v_and_b32 v3, 15, v0
    v_lshl_add_u32 v2, v3, 4, v2
    v_lshlrev_b32 v4, 4, v0
    s_lshr_b32 s27, s{sW}, 2
    s_and_b32 s28, s{sW}, 3
    s_lshl_b32 s24, s27, 5
    s_lshl_b32 s25, s28, 9
    s_add_u32 s24, s24, s25
    s_add_u32 s24, s24, s{sSIG}
    s_mul_i32 s24, s24, 1280
    s_add_u32 s25, s24, {256*1280}
    s_mul_i32 s26, s{sJ}, 160
    s_add_u32 s34, s24, s26
    s_add_u32 s35, s25, s26
    s_lshl_b32 s29, s28, 11
    s_waitcnt lgkmcnt(0)""")
    X = [8, 28]; SL = [48, 52]; CST = 56
    for hh in range(2):
        for n in range(5):
            vm.op(f"buffer_load_dwordx4 v[{X[hh]+4*n}:{X[hh]+4*n+3}], v2, {XS}, s{24+hh} offen offset:{256*n}", ("x", hh, n))
    for hh in range(2):
        vm.op(f"buffer_load_dwordx4 v[{SL[hh]}:{SL[hh]+3}], v2, {XS}, s{34+hh} offen", "sl")
    for ka in range(2):
        vm.op(f"buffer_load_dwordx4 v[{CST+4*ka}:{CST+4*ka+3}], v4, {TS}, s29 offen offset:{T_S1 + 1024*ka}", "cst")
    body, body4 = s1_stage(k, vm, 0, 28, CST, [0], 'dyn', U0, 64, gq_s=27)
    k(f"""s_mul_i32 s26, s{sW}, 1280
    v_lshrrev_b32 v5, 4, v0
    v_mul_u32_u24 v5, 160, v5
    v_lshl_add_u32 v5, v3, 4, v5
    v_add_u32 v5, s26, v5
    v_mov_b32 v6, 0x3f803f80""")
    A = 84
    for r in range(4): k(f"v_mov_b32 v{A+r}, 0")
    for hh in range(2):
        for n in range(5):
            vm.wait(("x", hh, n))
            for d in range(4):
                r = X[hh] + 4*n + d
                k(f"v_dot2c_f32_bf16 v{A+2*hh}, v{r}, v6\nv_dot2c_f32_bf16 v{A+2*hh+1}, v{r}, v{r}")
    stamp(k, 1, stamps)
    for m in ("quad_perm:[1,0,3,2]", "quad_perm:[2,3,0,1]", "row_half_mirror", "row_mirror"):
        for r in range(4): k(f"v_add_f32_dpp v{A+r}, v{A+r}, v{A+r} {m} row_mask:0xf bank_mask:0xf")
    for hh in range(2):
        m, q = A + 2*hh, A + 2*hh + 1
        k(f"""v_mul_f32 v{m}, 0x3acccccd, v{m}
        v_mul_f32 v{q}, 0x3acccccd, v{q}
        v_fma_f32 v{q}, -v{m}, v{m}, v{q}
        v_max_f32 v{q}, 0, v{q}
        v_add_f32 v{q}, 0x3727c5ac, v{q}
        v_rsq_f32 v{q}, v{q}""")
    for hh in range(2):
        m, q = A + 2*hh, A + 2*hh + 1
        k(f"v_mul_f32 v{m}, v{m}, v{q}")
    vm.wait("sl")
    for hh in range(2):
        m, q = A + 2*hh, A + 2*hh + 1
        t = 8 + 8*hh
        for d in range(4):
            k(f"v_lshlrev_b32 v{t+2*d}, 16, v{SL[hh]+d}\nv_and_b32 v{t+2*d+1}, 0xffff0000, v{SL[hh]+d}")
        for d in range(4):
            k(f"v_pk_fma_f32 v[{t+2*d}:{t+2*d+1}], v[{t+2*d}:{t+2*d+1}], v[{m}:{q}], v[{m}:{q}] op_sel:[0,1,0] op_sel_hi:[1,1,0] neg_lo:[0,0,1] neg_hi:[0,0,1]")
        for d in range(4):
            k(f"v_cvt_pk_f16_f32 v{SL[hh]+d}, v{t+2*d}, v{t+2*d+1}")
    k("v_cmp_gt_u32 vcc, 10, v3\ns_and_saveexec_b64 s[40:41], vcc")
    for hh in range(2): k(f"ds_write_b128 v5, v[{SL[hh]}:{SL[hh]+3}] offset:{640*hh}")
    k("s_mov_b64 exec, s[40:41]")
    vm.wait("cst")
    k("s_waitcnt lgkmcnt(0)\ns_barrier")
    stamp(k, 2, stamps)
    body()
    sk = k.label("sk"); k(f"s_cmp_eq_u32 s27, 0\ns_cbranch_scc1 {sk}")
    body4(); k.put(sk)
    stamp(k, 3, stamps); stamp_flush(k, 0, stamps)
    k("s_endpgm")
    k.put(prep)
    w2p, nou, fin = k.label("w2p"), k.label("nou"), k.label("fin")
    k(f"""s_sub_u32 s27, s{sW}, 8
    s_lshl_b32 s24, s27, 8
    s_add_u32 s24, s24, s2
    s_mul_i32 s40, s27, 12288
    s_add_u32 s40, s40, 10240
    v_lshrrev_b32 v2, 3, v0
    v_bfe_u32 v3, v0, 4, 2
    v_lshlrev_b32 v3, 1, v3
    v_and_b32 v4, 7, v0
    v_xor_b32 v3, v3, v4
    v_lshlrev_b32 v3, 4, v3
    v_lshlrev_b32 v9, 4, v0
    v_and_b32 v10, 3, v0
    v_lshlrev_b32 v10, 3, v10
    v_add_u32 v10, s40, v10""")
    l = k.label("pc2")
    k("s_getpc_b64 s[44:45]"); k.put(l)
    k(f"""s_sub_u32 s44, s44, {l}-code_start
    s_subb_u32 s45, s45, 0
    s_mov_b32 s46, code_end-code_start
    s_mov_b32 s47, 0x20000
    s_lshr_b32 s25, s2, 3
    s_lshl_b32 s26, s27, 5
    s_add_u32 s25, s25, s26
    s_lshl_b32 s25, s25, 10
    buffer_load_dwordx4 v[60:63], v9, s[44:47], s25 offen
    s_waitcnt lgkmcnt(0)
    s_mov_b32 s48, s38
    s_mov_b32 s49, s39
    s_mov_b32 s38, {D*F*2}
    s_mov_b32 s39, 0x20000
    s_mov_b32 s50, {D*F*2}
    s_mov_b32 s51, 0x20000
    s_cmp_ge_u32 s24, 400
    s_cbranch_scc1 {nou}
    s_cmp_ge_u32 s24, 240
    s_cbranch_scc1 {w2p}""")
    def init_words():
        z = k.label("z"); e = k.label("e")
        k(f"""s_lshl_b32 s28, s{sCL}, 3
        s_add_u32 s28, s28, s{sJ}
        s_cmp_eq_u32 s27, 0
        s_cbranch_scc0 {z}
        s_lshl_b32 s28, s28, 9
        s_add_u32 s28, s28, {ST}
        v_mov_b32 v12, -1
        v_mov_b32 v13, -1
        v_lshlrev_b32 v11, 3, v0
        buffer_store_dwordx2 v[12:13], v11, {WS}, s28 offen
        s_branch {e}""")
        k.put(z)
        k(f"""s_lshl_b32 s28, s{sCL}, 7
        s_lshl_b32 s29, s{sJ}, 4
        s_add_u32 s28, s28, s29
        s_add_u32 s28, s28, {FL}
        v_mov_b32 v12, 0
        v_lshrrev_b32 v11, 2, v0
        v_lshlrev_b32 v11, 12, v11
        v_and_b32 v13, 3, v0
        v_lshl_add_u32 v11, v13, 2, v11
        s_mov_b64 exec, 0xffff
        buffer_store_dword v12, v11, {WS}, s28 offen
        s_mov_b64 exec, -1""")
        k.put(e)
    k(f"""s_mul_i32 s25, s24, 2731
    s_lshr_b32 s25, s25, 16
    s_mul_i32 s26, s25, 24
    s_sub_u32 s26, s24, s26
    s_mul_i32 s28, s25, {64*3072}
    s_lshl_b32 s29, s26, 7
    s_add_u32 s28, s28, s29
    v_mul_u32_u24 v2, 3072, v2
    v_add_u32 v2, v2, v3
    s_mov_b32 m0, s40""")
    for i in range(8):
        k(f"buffer_load_dwordx4 v2, s[36:39], s28 offen lds")
        if i < 7: k(f"s_add_u32 s28, s28, {8*3072}\ns_add_u32 m0, m0, 1024")
    init_words()
    k("s_barrier")
    k(f"""v_bfe_u32 v5, v0, 2, 2
    v_lshrrev_b32 v6, 4, v0
    v_lshl_add_u32 v6, v6, 3, v5
    v_lshl_add_u32 v10, v6, 7, v10
    v_lshrrev_b32 v5, 1, v5
    v_lshl_add_u32 v10, v5, 5, v10
    v_xor_b32 v11, 32, v10
    v_xor_b32 v12, 64, v10
    v_xor_b32 v13, 96, v10
    s_lshl_b32 s26, s26, 2
    s_mul_i32 s25, s25, 6
    s_waitcnt vmcnt(0)""")
    if stamps: k("s_memrealtime s[62:63]")
    for ph in range(4):
        for ka in range(2):
            for h in range(2):
                r = 16 + 8*ph + 4*ka + 2*h
                k(f"ds_read_b64_tr_b16 v[{r}:{r+1}], v{10 + (ph ^ (2*h))} offset:{512*h + 4096*ka}")
    for ph in range(4):
        k(f"""s_add_u32 s28, s26, {ph}
        s_mul_i32 s29, s28, 21846
        s_lshr_b32 s29, s29, 16
        s_mul_i32 s30, s29, 57
        s_add_u32 s28, s28, s30
        s_add_u32 s28, s28, s25
        s_lshl_b32 s28, s28, 10
        s_add_u32 s28, s28, {W1F}
        s_waitcnt lgkmcnt({12 - 4*ph})""")
        for ka in range(2):
            r = 16 + 8*ph + 4*ka
            k(f"buffer_store_dwordx4 v[{r}:{r+3}], v9, {WS}, s28 offen offset:{3072*ka}")
    prepstamp(k, stamps)
    k("s_endpgm")
    k.put(w2p)
    k(f"""s_sub_u32 s24, s24, 240
    s_mul_i32 s25, s24, 6554
    s_lshr_b32 s25, s25, 16
    s_mul_i32 s26, s25, 10
    s_sub_u32 s26, s24, s26
    s_mul_i32 s28, s25, {96*1280}
    s_lshl_b32 s29, s26, 7
    s_add_u32 s28, s28, s29
    v_mul_u32_u24 v2, 1280, v2
    v_add_u32 v2, v2, v3
    s_mov_b32 m0, s40""")
    for i in range(12):
        k(f"buffer_load_dwordx4 v2, s[48:51], s28 offen lds")
        if i < 11: k(f"s_add_u32 s28, s28, {8*1280}\ns_add_u32 m0, m0, 1024")
    init_words()
    k("s_barrier")
    k(f"""v_lshrrev_b32 v6, 2, v0
    v_lshl_add_u32 v10, v6, 7, v10
    v_bfe_u32 v5, v0, 3, 2
    v_lshl_add_u32 v10, v5, 5, v10
    v_xor_b32 v11, 32, v10
    v_xor_b32 v12, 64, v10
    v_xor_b32 v13, 96, v10
    s_lshl_b32 s26, s26, 2
    s_lshr_b32 s30, s25, 1
    s_mul_i32 s30, s30, 30
    s_and_b32 s31, s25, 1
    s_mul_i32 s32, s31, 10
    s_add_u32 s32, s32, s30
    s_mul_i32 s33, s31, 5
    s_add_u32 s33, s33, s30
    s_add_u32 s33, s33, 20
    s_waitcnt vmcnt(0)""")
    if stamps: k("s_memrealtime s[62:63]")
    RR = [(0, 16), (48, 64), (32, 80)]
    for ph in range(4):
        for st in range(3):
            for h in range(2):
                r = 16 + 12*ph + 4*st + 2*h
                k(f"ds_read_b64_tr_b16 v[{r}:{r+1}], v{10 + ph} offset:{RR[st][h]*128}")
        k(f"""s_add_u32 s28, s26, {ph}
        s_mul_i32 s29, s28, 13108
        s_lshr_b32 s29, s29, 16
        s_mul_i32 s29, s29, 235
        s_add_u32 s28, s28, s29
        s_add_u32 s29, s28, s33
        s_add_u32 s28, s28, s32
        s_lshl_b32 s28, s28, 10
        s_lshl_b32 s29, s29, 10
        s_add_u32 s28, s28, {W2F}
        s_add_u32 s29, s29, {W2F}
        s_add_u32 s34, s28, 5120
        s_waitcnt lgkmcnt(0)""")
        for st, sr in enumerate((28, 34, 29)):
            r = 16 + 12*ph + 4*st
            k(f"buffer_store_dwordx4 v[{r}:{r+3}], v9, {WS}, s{sr} offen")
    prepstamp(k, stamps)
    k("s_endpgm")
    k.put(nou)
    init_words()
    k("s_barrier")
    if stamps: k("s_memrealtime s[62:63]")
    prepstamp(k, stamps)
    k.put(done); k("s_endpgm")
    return k

def finish(L, path):
    seen = []
    for k in L:
        if k not in seen:
            seen.append(k); k.lines = hazard.fix(k.lines)
    o = build(L, path)
    o = o.replace(".text\n", ".text\n.p2align 8\ncode_start:\n", 1)
    o = o.replace('.section .rodata,"a"\n', ".p2align 8\n.type tbl,@object\ntbl:\n" + tables.emit(TBLOB) + "code_end:\n" + '.section .rodata,"a"\n', 1)
    open(path, "w").write(o)

if __name__ == "__main__":
    finish([gen_ka()], sys.argv[1])
```

```python
from fnet import *
import os
LV, LHB, LX = 98304, 118912, 81920
sMODE = 59
def poll(k, addr_s, nl, target, vt):
    lp, ok = k.label("poll"), k.label("ok")
    k(f"s_mov_b32 s57, 0")
    k.put(lp)
    k(f"""buffer_load_dword v{vt+1}, v{vt}, {WS}, s{addr_s} offen sc1
    s_add_u32 s57, s57, 1
    s_cmp_gt_u32 s57, 0x80000
    s_cbranch_scc1 {ok}
    s_waitcnt vmcnt(0)
    v_cmp_gt_u32 vcc, {target}, v{vt+1}
    s_cbranch_vccnz {lp}""")
    k.put(ok)
    k("s_waitcnt vmcnt(0)")
def sync(k, vm, kind, vt, between=None):
    vm.drain(); k("s_barrier")
    sk = k.label("nf")
    if between: between()
    k(f"""s_cmp_lg_u32 s{sW}, 0
    s_cbranch_scc1 {sk}
    s_lshl_b32 s24, s{sMODE}, 13
    s_lshl_b32 s25, s{sCL}, 7
    s_add_u32 s24, s24, s25
    s_add_u32 s24, s24, {FL + 4096*kind}
    s_lshl_b32 s25, s{sJ}, 4
    s_add_u32 s25, s25, s24
    v_mov_b32 v{vt}, 0
    v_mov_b32 v{vt+1}, 1
    s_mov_b64 exec, 1
    buffer_store_dword v{vt+1}, v{vt}, {WS}, s25 offen sc1
    s_mov_b64 exec, -1
    v_and_b32 v{vt}, 7, v0
    v_lshlrev_b32 v{vt}, 4, v{vt}""")
    poll(k, 24, 8, 1, vt)
    k.put(sk)
    k("s_barrier")

OPT = set()
def until(k, name):
    for o in OPT:
        if o.startswith("until="):
            _, md, pt, T = o.split("=")
            if pt != name: continue
            e, l = k.label("ue"), k.label("ul")
            k(f'''s_cmp_lg_u32 s{sMODE}, {md}
            s_cbranch_scc1 {e}
            s_waitcnt lgkmcnt(0)
            s_add_u32 s90, s4, {STAMP + 0xF0000}
            s_addc_u32 s91, s5, 0
            s_load_dword s92, s[90:91], 0
            s_mov_b32 s93, 0
            s_waitcnt lgkmcnt(0)
            s_add_u32 s92, s92, {int(float(T)*100)}''')
            k.put(l)
            k(f'''s_memrealtime s[90:91]
            s_add_u32 s93, s93, 1
            s_cmp_gt_u32 s93, 10000
            s_cbranch_scc1 {e}
            s_waitcnt lgkmcnt(0)
            s_sub_u32 s90, s90, s92
            s_cmp_lt_i32 s90, 0
            s_cbranch_scc1 {l}''')
            k.put(e); k("s_waitcnt lgkmcnt(0)")
def gen_kb(stamps=False, stop=None):
    SC = '' if 'nosc' in OPT else ' sc1'
    k = K("kb_kernel", 256, 256, lds=160*1024, vgpr=256, agpr=256)
    kc = K("kc_kernel", 256, 256, lds=160*1024, vgpr=256, agpr=256)
    kc(f"s_mov_b32 s{sMODE}, 1\ns_branch kbc_common")
    k(f"s_mov_b32 s{sMODE}, 0"); k.put("kbc_common")
    done = k.label("done")
    ids(k, done)
    k("s_load_dwordx2 s[8:9], s[0:1], 0\ns_load_dwordx2 s[12:13], s[0:1], 64\ns_load_dwordx2 s[4:5], s[0:1], 80")
    stamp(k, 'start', stamps)
    until(k, 'start')
    tblsrd(k); ids2(k)
    vm = VM(k)
    k(f"""s_mov_b32 s6, 0x10000000
    s_mov_b32 s7, 0x20000
    s_mov_b32 s11, 0x20000
    s_mov_b32 s15, 0x20000
    s_lshr_b32 s24, s{sJ}, 2
    s_sub_u32 s25, 32, s{sSIG}
    s_and_b32 s25, s25, 31
    s_cmp_eq_u32 s24, 0
    s_cselect_b32 s25, s{sSIG}, s25
    s_mul_i32 s25, s25, 81920
    s_mul_i32 s26, s{sW}, 3
    s_lshl_b32 s27, s{sW}, 1
    s_add_u32 s27, s27, 2
    s_cmp_lt_u32 s{sW}, 2
    s_cselect_b32 s26, s26, s27
    s_lshl_b32 s27, s26, 13
    s_add_u32 s25, s25, s27
    s_mul_i32 s27, s{sMODE}, {U1 - U0}
    s_add_u32 s25, s25, s27
    s_lshl_b32 s28, s26, 9
    s_mul_i32 s29, s{sW}, 24576
    v_lshrrev_b32 v1, 3, v0
    v_lshlrev_b32 v1, 7, v1
    v_bfe_u32 v2, v0, 4, 2
    v_lshlrev_b32 v2, 1, v2
    v_and_b32 v3, 7, v0
    v_xor_b32 v2, v2, v3
    v_lshl_add_u32 v1, v2, 4, v1
    v_lshlrev_b32 v3, 4, v0
    v_bfe_u32 v2, v0, 3, 1
    v_lshlrev_b32 v2, 2, v2
    v_lshrrev_b32 v4, 4, v0
    v_add_u32 v2, v2, v4
    v_lshlrev_b32 v2, 6, v2
    s_mov_b32 m0, s29
    s_waitcnt lgkmcnt(0)""")
    S2C, HAC, TW, RES, HBC, OP, DD, PK, TMP, HD, WO, TT = 16, 24, 32, 80, 92, 128, 160, 176, 184, 186, 202, 210
    def udma(i):
        for x in range(8):
            if x == 4: k("s_add_u32 s25, s25, 4096\ns_add_u32 m0, m0, 4096")
            vm.op(f"buffer_load_dwordx4 v1, {WS}, s25 offen offset:{1024*(x & 3)} lds", ("u", i))
        k("s_add_u32 s25, s25, 4096\ns_add_u32 m0, m0, 4096")
    def twl(i):
        o = T_TW + 512*i
        k(f"s_add_u32 s30, s28, {o}")
        for x in range(4):
            vm.op(f"buffer_load_dwordx4 v[{TW+16*i+4*x}:{TW+16*i+4*x+3}], v2, {TS}, s30 offen offset:{16*x}", ("tw", i))
    udma(0)
    k(f"s_mov_b32 s30, {T_HA}")
    for T in range(2): vm.op(f"buffer_load_dwordx4 v[{HAC+4*T}:{HAC+4*T+3}], v3, {TS}, s30 offen offset:{1024*T}", "ha")
    twl(0); udma(1); twl(1)
    k(f"s_cmp_lt_u32 s{sW}, 2\ns_cselect_b32 s25, s25, {OOB}")
    udma(2); twl(2)
    k(f"s_lshl_b32 s30, s{sW}, 11\ns_add_u32 m0, s30, {LHB}\ns_add_u32 s30, s30, {T_HB}")
    for x in range(2): vm.op(f"buffer_load_dwordx4 v3, {TS}, s30 offen offset:{1024*x} lds", "hb")
    k(f"s_mov_b32 m0, {LHB + 8192}\ns_mov_b32 s30, {T_HB + 8192}")
    vm.op(f"buffer_load_dwordx4 v3, {TS}, s30 offen lds", "hb")
    m0l, m1l = k.label("m0"), k.label("m1")
    k(f"""s_mul_i32 s33, s{sCL}, 81920
    s_lshl_b32 s34, s{sJ}, 2
    s_add_u32 s34, s34, s{sW}
    s_mul_i32 s34, s34, 2560
    s_add_u32 s33, s33, s34
    s_and_b32 s35, s{sJ}, 3
    s_lshl_b32 s35, s35, 9
    s_lshl_b32 s36, s24, 5
    s_add_u32 s35, s35, s36
    s_add_u32 s35, s35, s{sSIG}
    s_cmp_eq_u32 s{sMODE}, 0
    s_cbranch_scc0 {m1l}
    s_lshl_b32 s31, s{sW}, 7
    s_add_u32 s31, s31, s35
    s_mul_i32 s31, s31, 1280
    s_add_u32 s32, s31, 81920
    s_mov_b32 s10, {S*D*2}
    s_mov_b32 s12, s4
    s_mov_b32 s13, s5
    s_mov_b32 s14, 0x10000000
    s_branch {m0l}""")
    k.put(m1l)
    k(f"""s_add_u32 s31, s33, {X2}
    s_add_u32 s32, s31, 1280
    s_mov_b32 s8, s4
    s_mov_b32 s9, s5
    s_mov_b32 s10, 0x10000000
    s_mov_b32 s14, {S*D*2}""")
    k.put(m0l)
    k(f"""v_and_b32 v15, 15, v0
    v_lshlrev_b32 v11, 5, v15
    v_lshl_add_u32 v13, v4, 3, v11
    v_cmp_gt_u32 vcc, 8, v15
    v_mov_b32 v12, {OOB}
    v_lshrrev_b32 v14, 5, v0
    v_lshl_add_u32 v14, v14, 4, v11
    v_mov_b32 v11, v13
    v_cndmask_b32 v12, v12, v11, vcc
    v_bfe_u32 v13, v0, 4, 1
    v_mul_u32_u24 v13, 1280, v13
    v_add_u32 v13, v13, v14
    v_mov_b32 v14, {OOB}
    v_cndmask_b32 v14, v14, v13, vcc
    v_cndmask_b32 v212, 0, 1.0, vcc""")
    for R in range(2):
        for tp in range(3):
            r = RES + 6*R + 2*tp
            vm.op(f"buffer_load_dwordx2 v[{r}:{r+1}], v{12 if tp == 2 else 11}, {XS}, s{31+R} offen offset:{512*tp}", "res")
    k(f"""s_lshl_b32 s37, s{sJ}, 2
    s_add_u32 s37, s37, s{sW}
    s_mul_i32 s37, s37, 61440
    s_add_u32 s38, s37, {W2F}
    s_add_u32 s37, s37, {W1F}""")
    w1n = [0]
    def w1load(n):
        for _ in range(n):
            f = w1n[0]; w1n[0] += 1
            vm.op(f"buffer_load_dwordx4 a[{4*f}:{4*f+3}], v3, {WS}, s37 offen offset:{1024*(f & 3)}", "w1")
            if f & 3 == 3: k("s_add_u32 s37, s37, 4096")
    w1load(16)
    k(f"""v_and_b32 v5, 7, v0
    v_lshl_add_u32 v5, v5, 6, s35
    v_cvt_f32_u32 v5, v5
    v_mul_f32 v5, 0x3a000000, v5
    v_lshlrev_b32 v6, 1, v4
    v_cvt_f32_u32 v6, v6
    v_bfe_u32 v7, v0, 3, 1
    v_cvt_f32_u32 v7, v7
    v_mul_f32 v7, 0x3e800000, v7
    v_fmac_f32 v7, v5, v6
    s_cmp_eq_u32 s{sSIG}, 0
    s_cselect_b32 s39, 1, 0
    s_and_b32 s40, s39, s24
    s_cmp_eq_u32 s24, 0
    s_cselect_b32 s42, 0x3e000000, 0xbe000000
    s_cmp_eq_u32 s39, 1
    s_cselect_b32 s42, 0, s42
    s_cmp_eq_u32 s40, 1
    s_cselect_b32 s41, 0, 0x3e000000
    s_cselect_b32 s42, 0x3e000000, s42
    s_cselect_b32 s43, 0, 0xbe800000""".replace("s_cselect_b32 s42, 0x3e000000, 0xbe000000", "s_mov_b32 s42, 0xbe000000\n    s_cselect_b32 s42, 0x3e000000, s42"))
    import struct
    fl = lambda x: "0x%08x" % struct.unpack("<I", struct.pack("<f", x))[0]
    for ka in range(2):
        for h in range(2):
            for u in range(2):
                c = 16*ka + 8*h + u; t = OP + 4*(4*ka + 2*h + u)
                k(f"v_fmamk_f32 v{t}, v5, {fl(c)}, v7\nv_add_f32 v{t+1}, s43, v{t}\nv_cos_f32 v{t}, v{t}\nv_cos_f32 v{t+1}, v{t+1}")
    for x in range(8):
        t = OP + 4*x
        k(f"v_mul_f32 v{t}, s41, v{t}\nv_mul_f32 v{t+1}, s42, v{t+1}\nv_cvt_pk_f16_f32 v{S2C+x}, v{t}, v{t+1}")
    k(f"""v_lshrrev_b32 v5, 2, v0
    v_lshlrev_b32 v5, 7, v5
    v_and_b32 v6, 3, v0
    v_lshl_add_u32 v5, v6, 3, v5
    v_bfe_u32 v6, v0, 3, 2
    v_lshl_add_u32 v5, v6, 5, v5
    v_add_u32 v5, s29, v5
    v_and_b32 v8, 7, v0
    v_mul_u32_u24 v8, 2576, v8
    v_mul_u32_u24 v9, 320, v4
    v_add_u32 v8, v8, v9
    v_bfe_u32 v9, v0, 3, 1
    v_lshl_add_u32 v8, v9, 3, v8
    s_lshl_b32 s30, s26, 4
    s_add_u32 s30, s30, {LV}
    v_add_u32 v8, s30, v8
    s_mul_i32 s30, s{sW}, 5152
    s_add_u32 s30, s30, {LV}
    v_mul_u32_u24 v9, 160, v15
    v_add_u32 v9, s30, v9
    v_bfe_u32 v10, v0, 4, 1
    v_lshl_add_u32 v10, v10, 4, v9
    v_lshl_add_u32 v9, v4, 4, v9
    v_xor_b32 v6, 64, v5
    v_xor_b32 v7, 96, v5
    v_mov_b32 v4, v5
    v_xor_b32 v5, 32, v5""")
    stamp(k, 'setup', stamps)
    for i in range(3):
        vm.wait(("tw", i), "ha") if i == 0 else vm.wait(("tw", i))
        sk = None
        if i == 2:
            sk = k.label("q2"); k(f"s_cmp_ge_u32 s{sW}, 2\ns_cbranch_scc1 {sk}")
        for t in range(4):
            for ka in range(2):
                for h in range(2):
                    r = OP + 8*t + 4*ka + 2*h
                    k(f"ds_read_b64_tr_b16 v[{r}:{r+1}], v{4+t} offset:{8192*i + 4096*ka + 2048*h}")
        if i < 2: w1load(12)
        for t in range(4):
            for ka in range(2):
                r = OP + 8*t + 4*ka
                k(f"s_waitcnt lgkmcnt({14 - 4*t - 2*ka})")
                c = "0" if ka == 0 else f"v[{DD+4*t}:{DD+4*t+3}]"
                k(f"v_mfma_f32_16x16x32_f16 v[{DD+4*t}:{DD+4*t+3}], v[{r}:{r+3}], v[{S2C+4*ka}:{S2C+4*ka+3}], {c}")
        for hp in range(2):
            for r in range(4):
                k(f"v_cvt_pk_f16_f32 v{PK+2*r+hp}, v{DD+8*hp+r}, v{DD+8*hp+4+r}")
        for p in range(2):
            for hp in range(2): k(f"v_mov_b32 v{TMP+hp}, v{PK+4*p+hp}")
            for hp in range(2): k(f"v_mov_b32_dpp v{PK+4*p+hp}, v{PK+4*p+2+hp} row_ror:8 row_mask:0xf bank_mask:0xc")
            for hp in range(2): k(f"v_mov_b32_dpp v{PK+4*p+2+hp}, v{TMP+hp} row_ror:8 row_mask:0xf bank_mask:0x3")
        for p in range(2):
            for T in range(2):
                d = HD + 8*p + 4*T
                k(f"v_mfma_f32_16x16x32_f16 v[{d}:{d+3}], v[{HAC+4*T}:{HAC+4*T+3}], v[{PK+4*p}:{PK+4*p+3}], 0")
        for p in range(2):
            for T in range(2):
                for u in range(2):
                    d = HD + 8*p + 4*T + 2*u; w = TW + 16*i + 8*p + 4*T + 2*u; t = DD + 2*(4*p + 2*T + u)
                    k(f"v_pk_mul_f32 v[{t}:{t+1}], v[{d}:{d+1}], v[{w}:{w+1}] op_sel_hi:[1,0]")
                    k(f"v_pk_fma_f32 v[{t}:{t+1}], v[{d}:{d+1}], v[{w}:{w+1}], v[{t}:{t+1}] op_sel:[1,1,0] op_sel_hi:[0,1,1] neg_hi:[1,0,0]")
                    k(f"v_cvt_pk_f16_f32 v{WO+2*(2*T+u)+p}, v{t}, v{t+1}")
        for T in range(2):
            for u in range(2):
                r = WO + 2*(2*T + u)
                k(f"ds_write_b64 v8, v[{r}:{r+1}] offset:{(8*T + u)*160 + 16*i}")
        if sk: k.put(sk)
    vm.wait("hb")
    w1load(20)
    stamp(k, 'quads', stamps)
    k("s_waitcnt lgkmcnt(0)\ns_barrier")
    k(f"v_add_u32 v213, {LHB}, v3")
    order = []
    for ks in range(3):
        for R in range(2):
            r = OP + 12*R + 4*ks
            k(f"ds_read_b128 v[{r}:{r+3}], v{10 if ks == 2 else 9} offset:{2576*R + 64*ks}")
        for tp in range(3):
            r = HBC + 4*(3*tp + ks)
            k(f"ds_read_b128 v[{r}:{r+3}], v213 offset:{1024*(3*tp + ks)}")
    for ks in range(3):
        for tp in range(3):
            k(f"s_waitcnt lgkmcnt({12 - 5*ks - tp})")
            for R in range(2):
                d = DD + 12*R + 4*tp; a = OP + 12*R + 4*ks; b = HBC + 4*(3*tp + ks)
                c = "0" if ks == 0 else f"v[{d}:{d+3}]"
                k(f"v_mfma_f32_16x16x32_f16 v[{d}:{d+3}], v[{a}:{a+3}], v[{b}:{b+3}], {c}")
    vm.wait("res")
    TU = 32
    for x in range(12): k(f"v_lshlrev_b32 v{TU+2*x}, 16, v{RES+x}\nv_and_b32 v{TU+2*x+1}, 0xffff0000, v{RES+x}")
    k("s_mov_b32 s44, 0x41000000")
    for x in range(12):
        k(f"v_pk_fma_f32 v[{DD+2*x}:{DD+2*x+1}], v[{DD+2*x}:{DD+2*x+1}], s[44:45], v[{TU+2*x}:{TU+2*x+1}] op_sel_hi:[1,0,1]")
    Q = 56
    def packstore(base, tagname):
        for tp in range(3):
            for R in range(2):
                for x in range(2):
                    s = DD + 12*R + 4*tp + 2*x
                    k(f"v_cvt_pk_bf16_f32 v{Q+4*tp+2*R+x}, v{s}, v{s+1}")
        k(f"s_add_u32 s30, s33, {base}")
        for tp in range(3):
            for x in range(2): k(f"v_permlane16_swap_b32 v{Q+4*tp+x}, v{Q+4*tp+2+x}")
            vm.op(f"buffer_store_dwordx4 v[{Q+4*tp}:{Q+4*tp+3}], v{14 if tp == 2 else 13}, {WS}, s30 offen offset:{512*tp} sc1", tagname)
    def reduce2(a, b, t):
        k(f"""v_permlane32_swap_b32 v{a}, v{b}
        v_add_f32 v{a}, v{a}, v{b}
        v_mov_b32 v{t}, v{a}
        v_permlane16_swap_b32 v{t}, v{a}
        v_add_f32 v{a}, v{a}, v{t}""")
        for m in ("quad_perm:[1,0,3,2]", "quad_perm:[2,3,0,1]", "row_half_mirror", "row_mirror"):
            k(f"v_add_f32_dpp v{a}, v{a}, v{a} {m} row_mask:0xf bank_mask:0xf")
    SA = 70
    for R in range(2):
        k(f"v_pk_add_f32 v[{SA+2*R}:{SA+2*R+1}], v[{DD+12*R}:{DD+12*R+1}], v[{DD+12*R+2}:{DD+12*R+3}]")
    for x in range(2, 6):
        for R in range(2):
            k(f"v_pk_add_f32 v[{SA+2*R}:{SA+2*R+1}], v[{SA+2*R}:{SA+2*R+1}], v[{DD+12*R+2*x}:{DD+12*R+2*x+1}]")
    for R in range(2): k(f"v_add_f32 v{SA+2*R}, v{SA+2*R}, v{SA+2*R+1}")
    reduce2(SA, SA + 2, SA + 1)
    k(f"v_mul_f32 v{SA}, 0x3acccccd, v{SA}")
    packstore(X1, "x1st")
    k(f"v_readlane_b32 s46, v{SA}, 0\nv_readlane_b32 s48, v{SA}, 32")
    for R in range(2):
        for x in range(6):
            d = DD + 12*R + 2*x
            if x < 4: k(f"v_pk_add_f32 v[{d}:{d+1}], v[{d}:{d+1}], s[{46+2*R}:{47+2*R}] op_sel_hi:[1,0] neg_lo:[0,1] neg_hi:[0,1]")
            else: k(f"v_pk_fma_f32 v[{d}:{d+1}], v[212:213], s[{46+2*R}:{47+2*R}], v[{d}:{d+1}] op_sel_hi:[0,0,1] neg_lo:[0,1,0] neg_hi:[0,1,0]")
    for R in range(2):
        k(f"v_pk_mul_f32 v[{SA+2*R}:{SA+2*R+1}], v[{DD+12*R}:{DD+12*R+1}], v[{DD+12*R}:{DD+12*R+1}]")
    for x in range(1, 6):
        for R in range(2):
            d = DD + 12*R + 2*x
            k(f"v_pk_fma_f32 v[{SA+2*R}:{SA+2*R+1}], v[{d}:{d+1}], v[{d}:{d+1}], v[{SA+2*R}:{SA+2*R+1}]")
    for R in range(2): k(f"v_add_f32 v{SA+2*R}, v{SA+2*R}, v{SA+2*R+1}")
    reduce2(SA, SA + 2, SA + 1)
    k(f"v_mov_b32 v{SA+1}, 0x3727c5ac\nv_fmac_f32 v{SA+1}, 0x3acccccd, v{SA}\nv_rsq_f32 v{SA}, v{SA+1}\ns_nop 0")
    k(f"v_readlane_b32 s46, v{SA}, 0\nv_readlane_b32 s48, v{SA}, 32")
    for R in range(2):
        for x in range(6):
            d = DD + 12*R + 2*x
            k(f"v_pk_mul_f32 v[{d}:{d+1}], v[{d}:{d+1}], s[{46+2*R}:{47+2*R}] op_sel_hi:[1,0]")
    Q = 72
    packstore(XN, "xnst")
    stamp(k, 'hb_ln', stamps); until(k, 'hb_ln')
    if stop == "p2":
        stamp_flush(k, 1, stamps); k.put(done); k("s_endpgm"); return k, kc
    vD, vA0, vA1, v8l, RING, ACC, PKO = 1, 4, 5, 2, 8, 24, 48
    W2V = 64
    k(f"""v_lshrrev_b32 v6, 3, v0
    v_and_b32 v7, 7, v0
    v_xor_b32 v7, v7, v6
    v_mul_u32_u24 v{vD}, 1280, v6
    v_lshl_add_u32 v{vD}, v7, 4, v{vD}
    v_lshrrev_b32 v6, 4, v0
    v_and_b32 v7, 7, v0
    v_xor_b32 v6, v6, v7
    v_lshlrev_b32 v6, 4, v6
    v_lshl_add_u32 v6, v7, 7, v6
    v_bfe_u32 v7, v0, 3, 1
    v_lshl_add_u32 v{vA0}, v7, 10, v6
    v_xor_b32 v{vA1}, 64, v{vA0}
    v_lshlrev_b32 v{v8l}, 3, v0
    s_lshr_b32 s26, s{sW}, 1
    s_and_b32 s27, s{sW}, 1
    s_mul_i32 s28, s{sCL}, 81920
    s_mul_i32 s29, s26, 10240
    s_add_u32 s28, s28, s29
    s_mul_i32 s29, s27, 640
    s_add_u32 s28, s28, s29
    s_add_u32 s28, s28, {XN}
    s_mul_i32 s29, s27, 10240
    s_lshl_b32 s26, s26, 10
    s_add_u32 s29, s29, s26
    s_lshl_b32 s40, s{sCL}, 3
    s_add_u32 s41, s40, s{sJ}
    s_mul_i32 s41, s41, 24576
    s_add_u32 s41, s41, {H}
    s_lshl_b32 s42, s{sW}, 9
    s_add_u32 s42, s42, s41
    s_add_u32 s42, s42, 4096
    s_lshl_b32 s43, s{sW}, 10
    s_add_u32 s41, s41, s43""")
    sync(k, vm, 0, 6)
    stamp(k, 'sync1', stamps)
    k("s_mov_b32 m0, s29")
    for mu in range(4):
        for i in range(5):
            vm.op(f"buffer_load_dwordx4 v{vD}, {WS}, s28 offen{SC} lds", ("xn", mu))
            if i < 4: k("s_add_u32 s28, s28, 128\ns_add_u32 m0, m0, 2048")
            elif mu < 3: k(f"s_add_u32 s28, s28, {20480 - 512}\ns_add_u32 m0, m0, {20480 - 8192}")
    w2n = [0]
    def w2reg(f): return f"v[{W2V+4*f}:{W2V+4*f+3}]" if f < 48 else f"a[{4*(f-48)}:{4*(f-48)+3}]"
    def w2load(n):
        for _ in range(n):
            f = w2n[0]; w2n[0] += 1
            vm.op(f"buffer_load_dwordx4 {w2reg(f)}, v3, {WS}, s38 offen offset:{1024*(f & 3)}", "w2")
            if f & 3 == 3: k("s_add_u32 s38, s38, 4096")
    def xread(s):
        mu, ka = divmod(s, 20); r = RING + 4*(s & 3)
        if mu == 3 and ka == 0: k(f"v_add_u32 v{vA0}, 61440, v{vA0}\nv_add_u32 v{vA1}, 61440, v{vA1}")
        k(f"ds_read_b128 v[{r}:{r+3}], v{vA1 if ka & 1 else vA0} offset:{(20480*mu if mu < 3 else 0) + 2048*(ka >> 1)}")
    def g1_epi(mu):
        a = ACC + 12*(mu & 1); ops = []
        for x in range(6): ops.append(f"v_cvt_pk_bf16_f32 v{PKO+x}, v{a+2*x}, v{a+2*x+1}")
        for x in range(6): ops.append(f"v_pk_max_i16 v{PKO+x}, v{PKO+x}, 0")
        ops.append(("vm", f"buffer_store_dwordx4 v[{PKO}:{PKO+3}], v3, {WS}, s41 offen sc1"))
        ops.append(("vm", f"buffer_store_dwordx2 v[{PKO+4}:{PKO+5}], v{v8l}, {WS}, s42 offen sc1"))
        ops.append("s_add_u32 s41, s41, 6144\ns_add_u32 s42, s42, 6144")
        return ops
    vm.wait(("xn", 0)); k("s_barrier")
    stamp(k, 'xn0', stamps)
    for s in range(3): xread(s)
    epi = []
    for s in range(80):
        mu, ka = divmod(s, 20)
        if ka == 16 and mu < 3:
            vm.wait(("xn", mu + 1)); k("s_barrier")
        if s + 3 < 80: xread(s + 3)
        k(f"s_waitcnt lgkmcnt({min(3, 79 - s)})")
        r = RING + 4*(s & 3)
        for nu in range(3):
            d = ACC + 12*(mu & 1) + 4*nu; f = 3*ka + nu
            c = "0" if ka == 0 else f"v[{d}:{d+3}]"
            k(f"v_mfma_f32_16x16x32_bf16 v[{d}:{d+3}], a[{4*f}:{4*f+3}], v[{r}:{r+3}], {c}")
            if nu == 0 and s < 48 and 'now2' not in OPT: w2load(1)
            if nu >= 1 and ka >= 3 and epi:
                o = epi.pop(0)
                if isinstance(o, tuple): vm.op(o[1], "hst")
                else: k(o)
        if ka == 19: epi = g1_epi(mu)
    for o in epi:
        if isinstance(o, tuple): vm.op(o[1], "hst")
        else: k(o)
    stamp(k, 'g1', stamps); until(k, 'g1')
    if stop == "g1":
        stamp_flush(k, 1, stamps); k.put(done); k("s_endpgm"); return k, kc
    GA, HR = 48, 128
    vH8, vPW, vRS, vOS, RS2, S1C = 1, 4, 5, 6, 8, 18
    k(f"""v_add_u32 v{vH8}, 4096, v{v8l}
    s_lshl_b32 s26, s{sW}, 1
    s_add_u32 s26, s26, s40
    s_mul_i32 s26, s26, 24576
    s_add_u32 s26, s26, {H}
    s_add_u32 s27, s26, 24576
    v_and_b32 v7, 15, v0
    v_lshrrev_b32 v30, 4, v0
    v_lshlrev_b32 v30, 3, v30
    v_mul_u32_u24 v{vRS}, 1280, v7
    v_add_u32 v{vRS}, v{vRS}, v30
    s_mul_i32 s28, s{sCL}, 81920
    s_mul_i32 s29, s{sW}, 20480
    s_add_u32 s28, s28, s29
    s_mul_i32 s29, s{sJ}, 160
    s_add_u32 s28, s28, s29
    s_add_u32 s31, s28, {X2}
    s_add_u32 s28, s28, {X1}
    s_lshr_b32 s32, s{sW}, 1
    s_lshl_b32 s32, s32, 5
    s_and_b32 s33, s{sW}, 1
    s_lshl_b32 s33, s33, 10
    s_add_u32 s32, s32, s33
    s_add_u32 s32, s32, s{sSIG}
    s_mul_i32 s32, s32, 1280
    s_add_u32 s32, s32, s29
    s_cmp_eq_u32 s{sMODE}, 0
    s_cselect_b32 s31, s31, s32
    s_mov_b32 s32, 81920
    s_cselect_b32 s32, 1280, s32
    v_mul_lo_u32 v{vOS}, v7, s32
    v_add_u32 v{vOS}, v{vOS}, v30
    s_lshl_b32 s33, s{sW}, 11""")
    sync(k, vm, 1, 32, between=lambda: w2load(12))
    stamp(k, 'sync2', stamps)
    vm.q = ["w2"]*12
    def hload(mu, ks):
        pi, kp = divmod(ks, 6); r = HR + 48*(mu & 1) + 4*ks
        if kp < 4: vm.op(f"buffer_load_dwordx4 a[{r}:{r+3}], v3, {WS}, s{26+pi} offen offset:{1024*kp}{SC}", ("h", mu, ks))
        else:
            for x in range(2):
                vm.op(f"buffer_load_dwordx2 a[{r+2*x}:{r+2*x+1}], v{vH8}, {WS}, s{26+pi} offen offset:{512*(2*(kp-4)+x)}{SC}", ("h", mu, ks))
        if ks == 11: k("s_add_u32 s26, s26, 6144\ns_add_u32 s27, s27, 6144")
    for mu in range(2):
        for ks in range(12): hload(mu, ks)
    for de in range(5): vm.op(f"buffer_load_dwordx2 v[{RS2+2*de}:{RS2+2*de+1}], v{vRS}, {WS}, s28 offen offset:{32*de}{SC}", "rs2")
    for ka in range(2): vm.op(f"buffer_load_dwordx4 v[{S1C+4*ka}:{S1C+4*ka+3}], v3, {TS}, s33 offen offset:{T_S1 + 1024*ka}", "s1c")
    def pw_addr(mu):
        k(f"s_sub_u32 s34, s{sW}, {mu+1}\ns_and_b32 s34, s34, 3\ns_mul_i32 s34, s34, 5120\ns_add_u32 s34, s34, {20480*mu}\nv_add_u32 v{vPW}, s34, v3")
    for mu in range(4):
        for ks in range(12):
            vm.wait(("h", mu, ks))
            if ks == 0: stamp(k, f'g2w{mu}', stamps)
            r = HR + 48*(mu & 1) + 4*ks
            for de in range(5):
                d = GA + 20*mu + 4*de
                c = "0" if ks == 0 else f"a[{d}:{d+3}]"
                k(f"v_mfma_f32_16x16x32_bf16 a[{d}:{d+3}], {w2reg(5*ks + de)}, a[{r}:{r+3}], {c}")
                if de == 1 and mu >= 1 and ks == 0: pw_addr(mu - 1)
                if de == 2 and mu >= 1 and 2 <= ks < 7:
                    dd = GA + 20*(mu - 1) + 4*(ks - 2)
                    k(f"ds_write_b128 v{vPW}, a[{dd}:{dd+3}] offset:{1024*(ks - 2)}")
            if mu < 2: hload(mu + 2, ks)
    pw_addr(3)
    for de in range(5):
        dd = GA + 60 + 4*de
        k(f"ds_write_b128 v{vPW}, a[{dd}:{dd+3}] offset:{1024*de}")
    stamp(k, 'g2', stamps)
    OWN, PR = 64, 84
    ls = [k.label("own") for _ in range(5)]
    for mu in range(4):
        k.put(ls[mu])
        if mu < 3: k(f"s_cmp_lg_u32 s{sW}, {mu}\ns_cbranch_scc1 {ls[mu+1]}")
        for x in range(20): k(f"v_accvgpr_read_b32 v{OWN+x}, a{GA+20*mu+x}")
        if mu < 3: k(f"s_branch {ls[4]}")
    k.put(ls[4])
    k(f"s_mul_i32 s34, s{sW}, 20480\nv_add_u32 v{vPW}, s34, v3")
    vm.wait("rs2", "s1c")
    k("s_waitcnt lgkmcnt(0)\ns_barrier")
    for sl in range(3):
        for de in range(5):
            r = PR + 20*sl + 4*de
            k(f"ds_read_b128 v[{r}:{r+3}], v{vPW} offset:{5120*sl + 1024*de}")
    TU = 144
    for x in range(10): k(f"v_lshlrev_b32 v{TU+2*x}, 16, v{RS2+x}\nv_and_b32 v{TU+2*x+1}, 0xffff0000, v{RS2+x}")
    for x in range(10): k(f"v_pk_add_f32 v[{OWN+2*x}:{OWN+2*x+1}], v[{OWN+2*x}:{OWN+2*x+1}], v[{TU+2*x}:{TU+2*x+1}]")
    for sl in range(3):
        for de in range(5):
            k(f"s_waitcnt lgkmcnt({14 - 5*sl - de})")
            for x in range(2):
                o, r = OWN + 4*de + 2*x, PR + 20*sl + 4*de + 2*x
                k(f"v_pk_add_f32 v[{o}:{o+1}], v[{o}:{o+1}], v[{r}:{r+1}]")
    for x in range(10): k(f"v_cvt_pk_bf16_f32 v{RS2+x}, v{OWN+2*x}, v{OWN+2*x+1}")
    for de in range(5): vm.op(f"buffer_store_dwordx2 v[{RS2+2*de}:{RS2+2*de+1}], v{vOS}, {OS}, s31 offen offset:{32*de}", "ost")
    stamp(k, 'red', stamps)
    fin = k.label("fin")
    k(f"s_cmp_eq_u32 s{sMODE}, 1\ns_cbranch_scc1 {fin}")
    def redg(a, t):
        k(f"v_mov_b32 v{t}, v{a}\nv_permlane16_swap_b32 v{t}, v{a}\nv_add_f32 v{a}, v{a}, v{t}\nv_mov_b32 v{t}, v{a}\nv_permlane32_swap_b32 v{t}, v{a}\nv_add_f32 v{a}, v{a}, v{t}")
    SA = 30
    k(f"v_pk_add_f32 v[{SA}:{SA+1}], v[{OWN}:{OWN+1}], v[{OWN+2}:{OWN+3}]")
    for x in range(2, 10): k(f"v_pk_add_f32 v[{SA}:{SA+1}], v[{SA}:{SA+1}], v[{OWN+2*x}:{OWN+2*x+1}]")
    k(f"v_add_f32 v{SA}, v{SA}, v{SA+1}")
    redg(SA, SA + 1)
    k(f"v_mul_f32 v{SA+2}, 0x3c4ccccd, v{SA}")
    for x in range(10): k(f"v_pk_add_f32 v[{TU+2*x}:{TU+2*x+1}], v[{OWN+2*x}:{OWN+2*x+1}], v[{SA+2}:{SA+3}] op_sel_hi:[1,0] neg_lo:[0,1] neg_hi:[0,1]")
    k(f"v_pk_mul_f32 v[{SA+4}:{SA+5}], v[{TU}:{TU+1}], v[{TU}:{TU+1}]")
    for x in range(1, 10): k(f"v_pk_fma_f32 v[{SA+4}:{SA+5}], v[{TU+2*x}:{TU+2*x+1}], v[{TU+2*x}:{TU+2*x+1}], v[{SA+4}:{SA+5}]")
    k(f"v_add_f32 v{SA+4}, v{SA+4}, v{SA+5}")
    redg(SA + 4, SA + 5)
    k(f"""v_mov_b32 v{SA+1}, v{SA+4}
    v_lshlrev_b32 v7, 3, v7
    s_lshl_b32 s34, s{sCL}, 12
    s_lshl_b32 s35, s{sW}, 7
    s_add_u32 s34, s34, s35
    s_add_u32 s34, s34, {ST}
    s_lshl_b32 s35, s{sJ}, 9
    s_add_u32 s35, s35, s34
    s_mov_b64 exec, 0xffff
    buffer_store_dwordx2 v[{SA}:{SA+1}], v7, {WS}, s35 offen sc1
    s_mov_b64 exec, -1
    v_lshrrev_b32 v{SA+2}, 4, v0
    v_lshl_add_u32 v7, v{SA+2}, 10, v7""")
    body, body4 = s1_stage(k, vm, LX, sW, S1C, [0, 1], True, U1, 170)
    k(f"""v_and_b32 v{SA+3}, 15, v0
    v_mul_u32_u24 v{SA+3}, 160, v{SA+3}
    v_lshl_add_u32 v{SA+3}, v{SA+2}, 3, v{SA+3}
    s_mul_i32 s35, s{sW}, 2560
    s_add_u32 s35, s35, {LX}
    v_add_u32 v{SA+3}, s35, v{SA+3}
    s_mov_b32 s57, 0""")
    lp, ok = k.label("sp"), k.label("sok")
    P = 36
    k.put(lp)
    k(f"""buffer_load_dwordx2 v[{P}:{P+1}], v7, {WS}, s34 offen sc1
    buffer_load_dwordx2 v[{P+2}:{P+3}], v7, {WS}, s34 offen offset:512 sc1
    s_add_u32 s57, s57, 1
    s_cmp_gt_u32 s57, 0x80000
    s_cbranch_scc1 {ok}
    s_waitcnt vmcnt(0)
    v_and_b32 v{P+4}, v{P}, v{P+1}
    v_and_b32 v{P+5}, v{P+2}, v{P+3}
    v_max_u32 v{P+4}, v{P+4}, v{P+5}
    v_cmp_eq_u32 vcc, -1, v{P+4}
    s_cbranch_vccnz {lp}""")
    k.put(ok)
    vm.drain()
    stamp(k, 'stats', stamps)
    k(f"v_add_f32 v{SA}, v{P}, v{P+2}")
    redg(SA, SA + 1)
    k(f"""v_mul_f32 v{SA}, 0x3acccccd, v{SA}
    v_fma_f32 v{P}, v{P}, s45, -v{SA}
    v_fma_f32 v{P+2}, v{P+2}, s45, -v{SA}
    v_mul_f32 v{P}, v{P}, v{P}
    v_fmac_f32 v{P}, v{P+2}, v{P+2}
    v_add_f32 v{P+1}, v{P+1}, v{P+3}
    v_fmac_f32 v{P+1}, 0x42a00000, v{P}""".replace("v_mul_f32 v30, 0x3acccccd, v30", "s_mov_b32 s45, 0x3c4ccccd\n    v_mul_f32 v30, 0x3acccccd, v30"))
    redg(P + 1, P)
    k(f"""v_mov_b32 v{SA+1}, 0x3727c5ac
    v_fmac_f32 v{SA+1}, 0x3acccccd, v{P+1}
    v_rsq_f32 v{SA+1}, v{SA+1}
    s_nop 0
    v_mul_f32 v{SA}, v{SA}, v{SA+1}""")
    for x in range(10):
        o = OWN + 2*x
        k(f"v_pk_fma_f32 v[{o}:{o+1}], v[{o}:{o+1}], v[{SA}:{SA+1}], v[{SA}:{SA+1}] op_sel:[0,1,0] op_sel_hi:[1,1,0] neg_lo:[0,0,1] neg_hi:[0,0,1]")
    for x in range(10): k(f"v_cvt_pk_f16_f32 v{TU+x}, v{OWN+2*x}, v{OWN+2*x+1}")
    for de in range(5): k(f"ds_write_b64 v{SA+3}, v[{TU+2*de}:{TU+2*de+1}] offset:{32*de}")
    k("s_waitcnt lgkmcnt(0)\ns_barrier")
    body(); body4()
    stamp(k, 's1', stamps)
    k.put(fin)
    until(k, 'end')
    stamp_flush(k, 1, stamps, sadd=sMODE)
    if 'dbg2' in OPT:
        e = k.label("nd2")
        nm = k.stn
        k(f'''s_cmp_lg_u32 s2, 0
        s_cbranch_scc1 {e}
        s_cmp_lg_u32 s{sW}, 0
        s_cbranch_scc1 {e}
        s_cmp_lg_u32 s{sMODE}, 1
        s_cbranch_scc1 {e}
        s_load_dwordx2 s[52:53], s[0:1], 72
        s_waitcnt vmcnt(0) lgkmcnt(0)
        s_mov_b32 s54, 256
        s_mov_b32 s55, 0x20000
        s_mov_b32 s56, {STAMP}
        v_mov_b32 v1, 0
        buffer_load_dword v3, v1, {WS}, s56 offen sc1''')
        spec = os.environ.get("DBGSEL", "0.0.0.min 0.0.0.max 0.0.1.max 0.0.3.max 3.0.1.max 3.0.2.max 3.1.1.max 3.1.2.max 1.0.start.min 1.0.start.max 1.0.s1.min 1.0.s1.max 2.0.start.min 2.0.start.max 2.0.red.min 2.0.red.max").split()
        k("v_lshlrev_b32 v4, 12, v0\ns_waitcnt vmcnt(0)\nv_readfirstlane_b32 s40, v3")
        for i, sp in enumerate(spec):
            sl, row, ix, op = sp.split("."); ix = nm.index(ix) if ix in nm else int(ix)
            k(f"s_mov_b32 s56, {STAMP + int(sl)*0x40000 + int(row)*128 + 4*ix}")
            for q in range(4): k(f"buffer_load_dword v{8+q}, v4, {WS}, s56 offen offset:{1024*q} sc1")
            k("s_waitcnt vmcnt(0)")
            for q in range(4): k(f"v_subrev_u32 v{8+q}, s40, v{8+q}")
            k(f"v_{op}_i32 v8, v8, v9\nv_{op}_i32 v10, v10, v11\nv_{op}_i32 v8, v8, v10\nv_readlane_b32 s41, v8, 0")
            for l in range(1, 64): k(f"v_readlane_b32 s42, v8, {l}\ns_{op}_i32 s41, s41, s42")
            k(f"v_mov_b32 v8, s41\nbuffer_store_dword v8, v1, s[52:55], 0 offen offset:{4*i}")
        k.put(e)
    k.put(done); k("s_endpgm")
    return k, kc

if __name__ == "__main__":
    path = sys.argv[1]; opts = sys.argv[2].split(",") if len(sys.argv) > 2 else []
    st = "stamp" in opts; OPT.update(opts)
    stop = "p2" if "p2" in opts else "g1" if "g1" in opts else None
    kb, kc = gen_kb(st, stop)
    L = [gen_ka(st, 'dbg' in opts), kb] + ([kc] if "nokc" not in opts and not stop else [])
    if 'pre' in opts:
        ke = K("ke_kernel", 256, 64, lds=0, vgpr=8); ke("s_endpgm"); L = [ke] + L
    if 'post' in opts:
        ke = K("ke_kernel", 256, 64, lds=0, vgpr=8); ke("s_endpgm"); L = L + [ke]
    if 'kadelay' in opts:
        ka = L[0]; i = max(j for j, l in enumerate(ka.lines) if "s_barrier" in l and j < [x for x, l2 in enumerate(ka.lines) if l2.strip().startswith("prep_")][0])
        ka.lines[i+1:i+1] = ["    s_memrealtime s[90:91]", "    s_waitcnt lgkmcnt(0)", "    s_add_u32 s92, s90, 400", "kadl:", "    s_memrealtime s[90:91]", "    s_waitcnt lgkmcnt(0)", "    s_cmp_lt_u32 s90, s92", "    s_cbranch_scc1 kadl"]
    finish(L, path)
```
